```python
import torch

def _softmax(x, axis=-1):
    return torch.softmax(x, dim=axis)
def _gelu(x):
    return torch.nn.functional.gelu(x, approximate="tanh")
def _silu(x):
    return torch.nn.functional.silu(x)
def _sigmoid(x):
    return torch.sigmoid(x)
def _layernorm(x, axis=-1, eps=1e-5):
    m = x.mean(dim=axis, keepdim=True)
    v = x.var(dim=axis, keepdim=True, unbiased=False)
    return (x - m) / torch.sqrt(v + eps)
def _scatter_add(tgt, idx, src, axis=0):
    return tgt.clone().index_add_(axis, idx, src)
def _segment_sum(src, seg, n):
    out = torch.zeros((n,) + src.shape[1:], dtype=src.dtype)
    return out.index_add_(0, seg, src)
def _pad(x, pw):
    flat = tuple(v for pair in reversed(pw) for v in pair)
    return torch.nn.functional.pad(x, flat)

kernel_name = 'recurrent_scan__spectral_gfnet__glu_gated_geglu__prompt'

def setup_inputs():

    _w = (lambda a: (lambda t: t.to(torch.bfloat16) if t.is_floating_point() else t)(torch.as_tensor(a)))
    def _A_setup():
        B, S, D = 1, 2048, 512
        Df = D // 2 + 1
        return {
            "x": _w((lambda *s: torch.randn(*s, dtype=torch.bfloat16) * 0.2)(B, S, D)),
            "w_r": _w((lambda *s: torch.randn(*s, dtype=torch.bfloat16) * 1.6)(S, Df) * 0.02),
            "w_i": _w((lambda *s: torch.randn(*s, dtype=torch.bfloat16) * 1.6)(S, Df) * 0.02),
        }
    _A_in = _A_setup()

    def _B_setup():
        B, S, Dm, Df = 1, 2048, 512, 1792
        return {
            "x": _w((lambda *s: torch.randn(*s, dtype=torch.bfloat16) * 0.2)(B, S, Dm)),
            "w_gate": _w((lambda *s: torch.randn(*s, dtype=torch.bfloat16) * 0.8)(Dm, Df) * (Dm ** -0.5)),
            "w_up": _w((lambda *s: torch.randn(*s, dtype=torch.bfloat16) * 0.8)(Dm, Df) * (Dm ** -0.5)),
            "w_down": _w((lambda *s: torch.randn(*s, dtype=torch.bfloat16) * 0.8)(Df, Dm) * (Df ** -0.5)),
        }
    _B_in = _B_setup()

    return {
        "A_x": _A_in["x"],
        "A_w_r": _A_in["w_r"],
        "A_w_i": _A_in["w_i"],
        "B_x": _B_in["x"],
        "B_w_gate": _B_in["w_gate"],
        "B_w_up": _B_in["w_up"],
        "B_w_down": _B_in["w_down"],
    }

def reference(A_x, A_w_r, A_w_i, B_x, B_w_gate, B_w_up, B_w_down):
    def _A_ref(x, w_r, w_i):
        B, S, D = x.shape
        X = (lambda x, axes=(-2,-1): torch.fft.rfft2(x.float(), dim=axes))(x, axes=(-2, -1))
        W = w_r + 1j * w_i
        X = X * W
        y = (lambda x, s, axes=(-2,-1): torch.fft.irfft2(x, s=s, dim=axes).to(torch.bfloat16))(X, (S, D), axes=(-2, -1))
        return y

    def _B_ref(x, w_gate, w_up, w_down):
        g = torch.einsum("bsd,df->bsf", x, w_gate)
        u = torch.einsum("bsd,df->bsf", x, w_up)
        h = _gelu(g) * u
        return torch.einsum("bsf,fd->bsd", h, w_down)

    x = A_x
    xn = _layernorm(x, axis=-1)
    s = _A_ref(xn, A_w_r, A_w_i)
    g = _silu(_B_ref(xn, B_w_gate, B_w_up, B_w_down))
    return x + s * g
```

```python
import re

def _regs(tok):
    tok = tok.strip()
    tok = tok.replace("abs(", "").replace(")", "") if tok.startswith("abs(") or tok.startswith("-abs(") else tok
    tok = tok.lstrip("-").strip("|")
    m = re.fullmatch(r"([vas])\[(\d+):(\d+)\]", tok)
    if m:
        return [f"{m.group(1)}{i}" for i in range(int(m.group(2)), int(m.group(3)) + 1)]
    m = re.fullmatch(r"([vas])(\d+)", tok)
    if m:
        return [tok]
    if tok in ("vcc", "exec"):
        return [tok + "_lo", tok + "_hi"]
    if tok in ("vcc_lo", "vcc_hi", "exec_lo", "exec_hi", "m0"):
        return [tok]
    return []

TRANS = ("v_exp_f32", "v_log_f32", "v_rcp_f32", "v_rsq_f32", "v_sqrt_f32", "v_sin_f32", "v_cos_f32")

class Ins:
    __slots__ = ("text", "mn", "ops", "rd", "wr", "kind", "tag", "mods", "meta")
    def __init__(self, text, tag=None, meta=None):
        self.text = text; self.tag = tag; self.meta = meta or {}
        t = text.split(";")[0].strip()
        self.rd = []; self.wr = []; self.kind = "other"; self.mn = ""; self.ops = []; self.mods = ""
        if not t or t.endswith(":") or t.startswith("."):
            self.kind = "label" if t.endswith(":") else "none"
            return
        parts = t.split(None, 1)
        mn = parts[0]; self.mn = mn
        rest = parts[1] if len(parts) > 1 else ""
        ops = [o.strip() for o in re.split(r",(?![^\[]*\])", rest)] if rest else []
        if ops:
            last = ops[-1].split()
            if last:
                ops[-1] = last[0]; self.mods = " ".join(last[1:])
        self.ops = ops
        R = lambda i: _regs(ops[i]) if i < len(ops) else []
        allr = lambda a: [r for i in range(a, len(ops)) for r in R(i)]
        base = mn.replace("_e32", "").replace("_e64", "").replace("_dpp", "")
        if mn.startswith("v_mfma"):
            self.kind = "mfma"; self.wr = R(0); self.rd = R(1) + R(2) + R(3)
            self.meta["A"] = R(1); self.meta["B"] = R(2); self.meta["C"] = R(3)
            self.meta["passes"] = 8 if "32x32x16" in mn else (4 if "16x16x32" in mn else None)
            assert self.meta["passes"]
        elif mn.startswith("buffer_load") or mn.startswith("global_load"):
            self.kind = "vmem"
            if "lds" in self.mods.split():
                self.rd = allr(0) + ["m0"]; self.meta["dma"] = True
            else:
                self.wr = R(0); self.rd = allr(1)
        elif mn.startswith("buffer_store") or mn.startswith("buffer_atomic"):
            self.kind = "vmem"; self.rd = allr(0); self.meta["store"] = R(0)
        elif mn.startswith("global_store"):
            self.kind = "vmem"; self.rd = allr(0); self.meta["store"] = R(1)
        elif mn in ("buffer_inv", "buffer_wbl2"):
            self.kind = "vmem"
        elif mn.startswith("ds_read"):
            self.kind = "ds"; self.wr = R(0); self.rd = allr(1)
        elif mn.startswith("ds_write"):
            self.kind = "ds"; self.rd = allr(0); self.meta["store"] = allr(1)
        elif mn.startswith("s_load") or mn in ("s_memtime", "s_memrealtime"):
            self.kind = "smem"; self.wr = R(0); self.rd = allr(1)
        elif mn.startswith("v_cmp"):
            self.kind = "valu"; self.wr = R(0); self.rd = allr(1)
        elif base in ("v_readlane_b32", "v_readfirstlane_b32"):
            self.kind = "valu"; self.wr = R(0); self.rd = allr(1); self.meta["readlane"] = True
        elif base == "v_writelane_b32":
            self.kind = "valu"; self.wr = R(0); self.rd = allr(0)
        elif base.startswith("v_permlane"):
            self.kind = "valu"; self.wr = R(0) + R(1); self.rd = R(0) + R(1); self.meta["permlane"] = True
        elif mn.startswith("v_"):
            self.kind = "valu"; self.wr = R(0); self.rd = allr(1)
            if base in ("v_fmac_f32", "v_dot2c_f32_bf16"): self.rd += R(0)
            if base == "v_cndmask_b32" and len(ops) == 3: self.rd += ["vcc_lo", "vcc_hi"]
            if "_dpp" in mn or "row_" in self.mods or "quad_perm" in self.mods:
                self.meta["dpp"] = True; self.rd += R(0)
            if base in TRANS: self.meta["trans"] = True
            if base in ("v_add_co_u32", "v_addc_co_u32"):
                self.wr = R(0) + R(1); self.rd = allr(2)
        elif mn == "s_waitcnt" or mn == "s_nop" or mn == "s_barrier" or mn == "s_endpgm" or mn == "s_sleep" or mn == "s_setprio":
            self.kind = "sctl"
        elif mn.startswith("s_cbranch") or mn == "s_branch":
            self.kind = "branch"
            if "vcc" in mn: self.rd = ["vcc_lo", "vcc_hi"]
        elif mn.startswith("s_cmp") or mn.startswith("s_bitcmp"):
            self.kind = "salu"; self.rd = allr(0)
        elif mn.startswith("s_"):
            self.kind = "salu"; self.wr = R(0); self.rd = allr(1)
            if "saveexec" in mn: self.wr += ["exec_lo", "exec_hi"]; self.rd += ["exec_lo", "exec_hi"]
        else:
            raise ValueError("unknown instruction: " + text)

class Prog:
    def __init__(self):
        self.L = []
    def I(self, text, tag=None, **meta):
        for line in text.split("\n"):
            if line.strip():
                self.L.append(Ins(line.strip(), tag, dict(meta)))
        return self
    def wait(self, *tags, lds=False):
        i = Ins("; wait " + ",".join(map(str, tags))); i.kind = "waittag"; i.meta["tags"] = set(tags); i.meta["lds"] = lds
        self.L.append(i); return self
    def assume(self, vm=(), drained=False):
        i = Ins("; assume"); i.kind = "assume"; i.meta["vm"] = list(vm); self.L.append(i); return self
    def expect(self, vm=()):
        i = Ins("; expect"); i.kind = "expect"; i.meta["vm"] = list(vm); self.L.append(i); return self
    def ext(self, other):
        self.L.extend(other.L if isinstance(other, Prog) else other); return self

def interleave(main, side, every=1, start=0, key=None, burst=1):
    out = []; si = 0; cnt = 0
    side = side.L if isinstance(side, Prog) else side
    for ins in (main.L if isinstance(main, Prog) else main):
        out.append(ins)
        if key is None or key(ins):
            cnt += 1
            if cnt > start and (cnt - start) % every == 0:
                for _ in range(burst):
                    if si < len(side):
                        out.append(side[si]); si += 1
    out.extend(side[si:])
    p = Prog(); p.L = out; return p

def spread(main, side, key=None, first=0, last=None):
    side = list(side.L if isinstance(side, Prog) else side)
    mainl = list(main.L if isinstance(main, Prog) else main)
    idx = [i for i, x in enumerate(mainl) if key is None or key(x)]
    if last is None: last = len(idx)
    idx = idx[first:last]
    n = len(idx); out = []; pos = {}
    for k in range(n):
        a = (k * len(side)) // n; b = ((k + 1) * len(side)) // n
        pos[idx[k]] = side[a:b]
    for i, x in enumerate(mainl):
        out.append(x)
        if i in pos: out.extend(pos[i])
    p = Prog(); p.L = out; return p

def resolve_waits(L, verbose=False):
    out = []
    vm = []
    lg = []
    sm = set()
    def emit_wait(vn=None, ln=None):
        s = []
        if vn is not None: s.append(f"vmcnt({min(vn,63)})")
        if ln is not None: s.append(f"lgkmcnt({min(ln,15)})")
        out.append(Ins("s_waitcnt " + " ".join(s)))
    for ins in L:
        if ins.kind == "assume":
            vm = [(t, set()) for t in ins.meta["vm"]]; lg = []; sm = set(); continue
        if ins.kind == "expect":
            want = ins.meta["vm"]; have = [t for t, _ in vm]
            assert not lg and not sm, ("expect: lds/smem pending", lg, sm)
            assert all(not r for _, r in vm), ("expect: register loads pending", vm)
            assert have == want[len(want) - len(have):], ("expect mismatch", have, want)
            continue
        if ins.kind == "waittag":
            q = lg if ins.meta["lds"] else vm
            last = max([i for i, (t, _) in enumerate(q) if t in ins.meta["tags"]], default=-1)
            if last >= 0:
                n = len(q) - 1 - last
                if ins.meta["lds"]:
                    assert not sm
                    emit_wait(ln=n); lg = lg[len(lg) - min(n, 15):] if n else []
                else:
                    emit_wait(vn=n); vm = vm[len(vm) - min(n, 63):] if n else []
            continue
        if ins.kind in ("label", "none"):
            out.append(ins); continue
        if ins.mn == "s_waitcnt":
            m = re.search(r"vmcnt\((\d+)\)", ins.text)
            if m:
                n = int(m.group(1)); vm = vm[len(vm) - n:] if n < len(vm) and n else ([] if n == 0 else vm)
            m = re.search(r"lgkmcnt\((\d+)\)", ins.text)
            if m:
                n = int(m.group(1))
                if n == 0: lg = []; sm = set()
                elif not sm: lg = lg[len(lg) - n:] if n < len(lg) else lg
            out.append(ins); continue
        touched = set(ins.rd) | set(ins.wr)
        vn = ln = None
        last = max([i for i, (_, r) in enumerate(vm) if r & touched], default=-1)
        if last >= 0: vn = len(vm) - 1 - last
        if sm & touched: ln = 0
        last = max([i for i, (_, r) in enumerate(lg) if r & touched], default=-1)
        if last >= 0:
            n = len(lg) - 1 - last
            if sm: n = 0
            ln = n if ln is None else min(ln, n)
        if vn is not None or ln is not None:
            emit_wait(vn, ln)
            if vn is not None: vn = min(vn, 63); vm = vm[len(vm) - vn:] if vn else []
            if ln is not None:
                ln = min(ln, 15)
                lg = lg[len(lg) - ln:] if ln else []
                if ln == 0: sm = set()
        out.append(ins)
        if ins.kind == "vmem":
            vm.append((ins.tag, set(ins.wr)))
            assert len(vm) <= 63, "too many outstanding vmem ops at " + ins.text
        elif ins.kind == "ds":
            lg.append((ins.tag, set(ins.wr)))
        elif ins.kind == "smem":
            sm |= set(ins.wr)
    return out

def pad_hazards(L):
    out = []
    hist = []
    def states(ins):
        if ins.mn == "s_nop": return int(ins.ops[0]) + 1
        return 1
    real = []
    nops = 0
    for ins in L:
        if ins.kind in ("label", "none"):
            out.append(ins); continue
        need = 0
        dist = 0
        rd, wr = set(ins.rd), set(ins.wr)
        for p in reversed(real[-24:]):
            pw, pr = set(p.wr), set(p.rd)
            req = 0
            if p.kind == "mfma":
                ps = p.meta["passes"]; big = {4: 8, 8: 12}[ps]
                if ins.kind == "mfma":
                    if pw & (set(ins.meta["A"]) | set(ins.meta["B"])): req = max(req, big)
                    C = ins.meta["C"]
                    if pw & set(C):
                        if not (C == p.wr and ins.meta["passes"] == ps): req = max(req, {4: 6, 8: 10}[ps])
                    elif pw & wr:
                        req = max(req, {4: 6, 8: 10}[ps])
                elif ins.kind in ("valu", "vmem", "ds"):
                    if pw & (rd | wr): req = max(req, big)
                    if ins.kind == "valu" and set(p.meta["C"]) & wr: req = max(req, {4: 3, 8: 7}[ps])
            if p.kind == "valu":
                vw = {r for r in pw if r[0] in "va" and r not in ("vcc_lo", "vcc_hi")}
                sw = pw - vw
                if ins.kind == "mfma" and vw & rd: req = max(req, 2)
                if ins.kind == "valu":
                    if ins.meta.get("dpp") and vw & rd: req = max(req, 2)
                    if ins.meta.get("permlane") and vw & rd: req = max(req, 2)
                    if ins.meta.get("readlane") and vw & rd: req = max(req, 1)
                    if p.meta.get("trans") and vw & rd: req = max(req, 1)
                    if sw & rd: req = max(req, 4 if ins.meta.get("readlane") else 2)
                if ins.kind == "vmem" and sw & rd: req = max(req, 5)
                if ins.kind in ("salu", "branch") and sw & rd: req = max(req, 1)
            if p.kind in ("vmem",) and p.meta.get("store") and len(p.meta["store"]) >= 3:
                if set(p.meta["store"]) & wr: req = max(req, 2)
            if p.kind == "salu" and "m0" in pw and ins.kind == "vmem" and ins.meta.get("dma"): req = max(req, 1)
            if p.kind == "salu" and ({"exec_lo", "exec_hi"} & pw) and ins.kind == "valu" and ins.meta.get("dpp"): req = max(req, 0)
            need = max(need, req - dist)
            dist += states(p)
            if dist >= 20: break
        while need > 0:
            k = min(need, 16)
            n = Ins(f"s_nop {k-1}"); out.append(n); real.append(n); need -= k; nops += 1
        out.append(ins); real.append(ins)
    return out, nops

def render(L):
    s = []
    for ins in L:
        t = ins.text
        if ins.kind == "label" or t.startswith("."): s.append(t)
        else: s.append("    " + t)
    return "\n".join(s) + "\n"
```

```python
import sys, struct, math
sys.path.insert(0, "gen")
from asmgen import *

NAME = "recurrent_scan__spectral_gfnet__glu_gated_geglu__prompt"
def f2u(x): return "0x%08x" % struct.unpack("<I", struct.pack("<f", x))[0]

WS_EPOCH = 0
WS_FH = 0x1000; WS_FX = 0x2000; WS_FW = 0x3000; WS_FZ = 0x4000
WS_ST = 0x10000
WS_X1 = 0x100000; WS_WT = 0x300000; WS_Z = 0x500000; WS_H = 0x700000
WS_DBG = 0xF00000; WS_SIZE = 0x1000000
XS = 33280
WRING = 3 * XS
RTAB = 4 * XS
ERS = 144
E1 = 0; E2 = 2 * 32 * ERS
STG = 2 * E2
sW = "s3"
SX, SG, SU, SD, SR, SI, SO, SS = ("s[8:11]", "s[12:15]", "s[16:19]", "s[20:23]", "s[24:27]", "s[28:31]", "s[32:35]", "s[36:39]")
sTAG, sJ, sI, sN, sMG, sBROT, sPROT, sDFT = "s40", "s41", "s42", "s43", "s44", "s45", "s46", "s47"
sXW, sXM = "s48", "s49"
sHB = "s50"
sT0, sCT, sKP = "s51", "s52", "s53"
sSPIN = "s54"
t0, t1, t2, t3, t4, t5 = "s56", "s57", "s58", "s59", "s60", "s61"
LOG2E = 1.4426950408889634
K1 = 2 * 0.7978845608028654

class Cfg:
    stamps = False
    mapping = 0
    stop_after = None
    dbg = False
    G = 4
cfg = Cfg()

nstamp = [0]
STR = ['s69','s70','s71','s72','s73','s74','s75','s76','s77','s78','s79','s6','s7','s55']
def stamp(P):
    if cfg.stamps:
        i = nstamp[0]; nstamp[0] += 1
        assert i < 14
        P.I("s_memtime s[94:95]")
        P.I("s_waitcnt lgkmcnt(0)")
        P.I(f"s_sub_u32 {STR[i]}, s94, s98")

def v4(b): return f"v[{b}:{b+3}]"
def a4(b): return f"a[{b}:{b+3}]"
def v16(b): return f"v[{b}:{b+15}]"

lblc = [0]
slow = Prog()
def poll(P, load_text, dst_regs, lanes_mask=None, pre_issued_tag=None):
    n = lblc[0]; lblc[0] += 1
    def cmp(Q):
        Q.I(f"v_cmp_ne_u32 vcc, {sTAG}, {dst_regs[0]}")
        for r in dst_regs[1:]:
            Q.I(f"v_cmp_ne_u32 s[62:63], {sTAG}, {r}")
            Q.I(f"s_or_b64 vcc, vcc, s[62:63]")
        if lanes_mask is not None:
            Q.I(f"s_and_b32 vcc_lo, vcc_lo, {lanes_mask & 0xffffffff:#x}")
            Q.I(f"s_and_b32 vcc_hi, vcc_hi, {lanes_mask >> 32:#x}")
        Q.I("s_cmp_lg_u64 vcc, 0")
    if not pre_issued_tag:
        for l in load_text: P.I(l)
    cmp(P)
    P.I(f"s_cbranch_scc1 L_slow{n}")
    P.I(f"L_back{n}:")
    S = Prog()
    S.assume()
    S.I(f"L_slow{n}:")
    S.I(f"s_cmp_eq_u32 {sSPIN}, 0")
    S.I(f"s_cbranch_scc1 L_back{n}")
    S.I(f"s_sub_u32 {sSPIN}, {sSPIN}, 1")
    S.I("s_sleep 2")
    for l in load_text: S.I(l)
    S.I("s_waitcnt vmcnt(0)")
    cmp(S)
    S.I(f"s_cbranch_scc1 L_slow{n}")
    S.I("s_nop 4")
    S.I(f"s_branch L_back{n}")
    slow.ext(S)

def flag_store(P, voff_expr_sgpr, tmpv="v14", tmpa="v15"):
    P.I(f"v_mov_b32 {tmpv}, {sTAG}")
    P.I(f"v_mov_b32 {tmpa}, 0")
    P.I("s_mov_b64 exec, 1")
    P.I(f"buffer_store_dword {tmpv}, {tmpa}, {SS}, {voff_expr_sgpr} offen sc1", tag="flag")
    P.I("s_mov_b64 exec, -1")

def block_T(P, dst, b):
    P.I(f"s_add_u32 {dst}, {sBROT}, {b}")
    P.I(f"s_and_b32 {dst}, {dst}, 7")
    P.I(f"s_lshl_b32 {t5}, {sMG}, 3")
    P.I(f"s_or_b32 {dst}, {dst}, {t5}")

def x_dma(b):
    P = Prog(); slot = (b % 4) * XS
    P.I(f"s_add_u32 s64, {sBROT}, {b}")
    P.I(f"s_and_b32 s64, s64, 7")
    P.I(f"s_lshl_b32 s64, s64, 10")
    P.I(f"s_add_u32 s64, s64, {sXW}")
    for a in range(2):
        P.I(f"s_add_u32 m0, {sXM}, {slot + a*4*1040}")
        if a: P.I(f"s_add_u32 s64, s64, {8*65536}")
        for r in range(4):
            P.I(f"buffer_load_dwordx4 v{8+r}, {SX}, s64 offen offset:{r*1040} lds", tag=f"X{b}")
    return P

def w_dma(p):
    P = Prog(); slot = WRING + (p % 3) * 16384
    P.I(f"s_add_u32 {t0}, {sPROT}, {p}")
    P.I(f"s_and_b32 {t0}, {t0}, 7")
    P.I(f"s_mul_i32 {t0}, {t0}, {64*3584}")
    P.I(f"s_add_u32 {t0}, {t0}, s67")
    P.I(f"s_add_u32 {t1}, {t0}, {8*3584}")
    for mtx, srd, vo in ((0, SG, "v5"), (1, SU, "v6")):
        for e in range(2):
            P.I(f"s_add_u32 m0, s68, {slot + mtx*8192 + e*1024}")
            P.I(f"buffer_load_dwordx4 {vo}, {srd}, {t1 if e else t0} offen lds", tag=f"P{p}")
    return P

ACC = [16, 32]
RING = 48
def xfrag_read(b, q):
    G = cfg.G; NR = 3 * G
    gq = b * 32 + q
    reg = RING + 4 * (gq % NR)
    slot = b % 4
    base = "v3" if slot < 2 else "v4"
    return f"ds_read_b128 {v4(reg)}, {base} offset:{(slot & 1) * XS + q * 32}", reg, f"xf{gq // G}"

def gemm1_block(b, dft, epi, first_reads_done=True):
    G = cfg.G
    M = Prog()
    acc = ACC[b & 1]
    for q in range(32):
        if q % G == 0:
            M.wait(f"xf{(b*32+q)//G}", lds=True)
        _, reg, _ = xfrag_read(b, q)
        c = "0" if q == 0 else v16(acc)
        if dft:
            M.I(f"v_mfma_f32_32x32x16_bf16 {v16(acc)}, {v4(reg)}, {v4(128+4*q)}, {c}")
        else:
            M.I(f"v_mfma_f32_32x32x16_bf16 {v16(acc)}, {a4(4*q)}, {v4(reg)}, {c}")
        nq = q + 2 * G
        if q == 23 - G and b < 7:
            M.wait(f"X{b+1}")
            M.I("s_barrier")
        if nq < 32:
            t, _, tg = xfrag_read(b, nq); M.I(t, tag=tg)
        elif b < 7:
            t, _, tg = xfrag_read(b + 1, nq - 32); M.I(t, tag=tg)
    ismf = lambda i: i.kind == "mfma"
    if b + 2 <= 7 and b >= 1:
        M = spread(M, x_dma(b + 2), key=ismf, first=1, last=31)
    if epi is not None:
        M = spread(M, epi, key=ismf, first=2, last=32)
    return M

CS = 160
ST = 96
def ffn_epilogue(b):
    P = Prog(); acc = ACC[b & 1]
    m, V = f"v{ST+4*b}", f"v{ST+4*b+1}"
    vr, vA, vB, vN = "v152", "v153", "v154", "v155"
    T = [f"v{128+i}" for i in range(8)]
    out = 144 + 4 * (b & 1)
    P.I(f"v_rsq_f32 {vr}, {V}")
    P.I(f"v_mul_f32 {vN}, -1.0, {m}")
    P.I(f"v_mul_f32 {vA}, {f2u(-K1*LOG2E)}, {vr}")
    P.I(f"v_mul_f32 {vB}, {vr}, {vr}")
    for r in range(16): P.I(f"v_fmac_f32 v{acc+r}, {vN}, v{CS+r}")
    P.I(f"v_mul_f32 {vB}, {f2u(0.044715)}, {vB}")
    P.I(f"v_mul_f32 {vB}, {vB}, {vA}")
    for r in range(8): P.I(f"v_mul_f32 {T[r]}, v{acc+r}, v{acc+r}")
    for r in range(8): P.I(f"v_fma_f32 {T[r]}, {vB}, {T[r]}, {vA}")
    for r in range(8): P.I(f"v_mul_f32 {T[r]}, v{acc+r}, {T[r]}")
    for r in range(8):
        P.I(f"v_exp_f32 {T[r]}, {T[r]}")
        P.I(f"v_mul_f32 v{acc+8+r}, v{acc+r}, v{acc+8+r}")
    for r in range(8): P.I(f"v_fma_f32 {T[r]}, {T[r]}, {V}, {V}")
    for r in range(8): P.I(f"v_rcp_f32 {T[r]}, {T[r]}")
    for r in range(8): P.I(f"v_mul_f32 {T[r]}, v{acc+8+r}, {T[r]}")
    for r in range(4): P.I(f"v_cvt_pk_bf16_f32 v{out+r}, {T[2*r]}, {T[2*r+1]}")
    P.I(f"s_add_u32 s65, {sBROT}, {b}")
    P.I(f"s_and_b32 s65, s65, 7")
    P.I(f"s_mul_i32 s65, s65, {112*1024}")
    P.I(f"s_add_u32 s65, s65, {sHB}")
    P.I(f"buffer_store_dwordx4 {v4(out)}, v2, {SS}, s65 offen sc1", tag="hst")
    return P

def dft_epilogue(b):
    P = Prog(); acc = ACC[b & 1]
    rr = 96; out = 112
    for k in range(4):
        P.I(f"ds_read_b128 {v4(rr+4*k)}, v7 offset:{b*128 + k*32}")
    for r in range(16): P.I(f"v_mul_f32 v{acc+r}, v{acc+r}, v{rr+r}")
    for r in range(8): P.I(f"v_cvt_pk_bf16_f32 v{out+r}, v{acc+2*r}, v{acc+2*r+1}")
    P.I(f"s_add_u32 s65, {sBROT}, {b}")
    P.I(f"s_and_b32 s65, s65, 7")
    P.I(f"s_lshl_b32 s65, s65, 6")
    P.I(f"s_add_u32 s65, s65, {sHB}")
    P.I(f"buffer_store_dwordx4 {v4(out)}, v5, {SS}, s65 offen sc1", tag="hst")
    P.I(f"buffer_store_dwordx4 {v4(out+4)}, v5, {SS}, s65 offen offset:16 sc1", tag="hst")
    return P

def reduce64(P, regs, sdst):
    for ctl in ("row_shr:1", "row_shr:2", "row_shr:4", "row_shr:8"):
        for r in regs: P.I(f"v_add_f32_dpp {r}, {r}, {r} {ctl} row_mask:0xf bank_mask:0xf bound_ctrl:0")
    for r in regs: P.I(f"v_add_f32_dpp {r}, {r}, {r} row_bcast:15 row_mask:0xa bank_mask:0xf")
    for r in regs: P.I(f"v_add_f32_dpp {r}, {r}, {r} row_bcast:31 row_mask:0xc bank_mask:0xf")
    for r, s in zip(regs, sdst): P.I(f"v_readlane_b32 {s}, {r}, 63")

def stats_loads(P):
    P.I(f"""s_and_b32 {t0}, s2, 1
s_lshl_b32 {t0}, {t0}, 4
s_lshr_b32 {t1}, {sW}, 1
s_lshl_b32 {t1}, {t1}, 3
s_or_b32 {t0}, {t0}, {t1}
s_and_b32 {t1}, s2, 2
s_lshl_b32 {t1}, {t1}, 1
s_or_b32 {t0}, {t0}, {t1}
s_and_b32 {t1}, {sW}, 1
s_lshl_b32 {t1}, {t1}, 1
s_or_b32 {t0}, {t0}, {t1}
s_lshl_b32 {t0}, {t0}, 16
s_lshr_b32 {t1}, s2, 2
s_lshl_b32 {t1}, {t1}, 10
s_add_u32 {t0}, {t0}, {t1}
s_add_u32 {t1}, {t0}, 65536""")
    P.I(f"buffer_load_dwordx4 v[48:51], v2, {SX}, {t0} offen")
    P.I(f"buffer_load_dwordx4 v[52:55], v2, {SX}, {t1} offen")

def stats_compute(P):
    for e in range(2):
        for k in range(4):
            P.I(f"v_lshlrev_b32 v{56+8*e+2*k}, 16, v{48+4*e+k}")
            P.I(f"v_and_b32 v{57+8*e+2*k}, 0xffff0000, v{48+4*e+k}")
    for e in range(2): P.I(f"v_add_f32 v{72+e}, v{56+8*e}, v{57+8*e}")
    for k in range(2, 8):
        for e in range(2): P.I(f"v_add_f32 v{72+e}, v{72+e}, v{56+8*e+k}")
    reduce64(P, ["v72", "v73"], [t0, t1])
    for e, s in ((0, t0), (1, t1)):
        P.I(f"v_mov_b32 v{74+e}, {s}")
        P.I(f"v_mul_f32 v{74+e}, {f2u(1/512)}, v{74+e}")
    for k in range(8):
        for e in range(2): P.I(f"v_sub_f32 v{56+8*e+k}, v{56+8*e+k}, v{74+e}")
    for e in range(2): P.I(f"v_mul_f32 v{72+e}, v{56+8*e}, v{56+8*e}")
    for k in range(1, 8):
        for e in range(2): P.I(f"v_fmac_f32 v{72+e}, v{56+8*e+k}, v{56+8*e+k}")
    reduce64(P, ["v72", "v73"], [t0, t1])
    P.I(f"v_mov_b32 v77, {t0}")
    P.I(f"v_mov_b32 v78, {t1}")
    P.I("v_cmp_eq_u32 vcc, 0, v1")
    P.I("v_cndmask_b32 v76, v75, v74, vcc")
    P.I("v_cndmask_b32 v77, v78, v77, vcc")
    P.I(f"v_mov_b32 v79, {f2u(1e-5)}")
    P.I(f"v_fmamk_f32 v77, v77, {f2u(1/512)}, v79")
    P.I(f"v_mov_b32 v78, {sTAG}")
    P.I(f"v_mov_b32 v79, {sTAG}")
    P.I(f"s_lshl_b32 {t0}, s2, 7")
    P.I(f"s_lshl_b32 {t1}, {sW}, 5")
    P.I(f"s_add_u32 {t0}, {t0}, {t1}")
    P.I(f"s_add_u32 {t0}, {t0}, {WS_ST}")
    P.I("s_mov_b64 exec, 3")
    P.I(f"buffer_store_dwordx4 v[76:79], v2, {SS}, {t0} offen sc1", tag="stst")
    P.I("s_mov_b64 exec, -1")

def wt_loads(rb):
    P = Prog()
    P.I(f"v_lshl_add_u32 v{rb+16}, v0, 1, 2")
    P.I(f"""s_lshr_b32 {t0}, s2, 4
s_lshl_b32 {t0}, {t0}, 7
s_and_b32 {t1}, s2, 15
s_add_u32 {t0}, {t0}, {t1}
s_mul_i32 {t0}, {t0}, 514""")
    for idx in range(8):
        mb, r = idx >> 2, idx & 3
        P.I(f"s_add_u32 {t1}, {t0}, {mb*16*514 + r*32*514}")
        P.I(f"buffer_load_ushort v{rb+idx}, v{rb+16}, {SR}, {t1} offen")
        P.I(f"buffer_load_ushort v{rb+8+idx}, v{rb+16}, {SI}, {t1} offen")
    return P
def wt_store(rb):
    P = Prog()
    for k in range(8):
        P.I(f"v_lshl_or_b32 v{rb+k}, v{rb+2*k+1}, 16, v{rb+2*k}")
    P.I(f"v_lshlrev_b32 v{rb+16}, 13, v0")
    P.I(f"s_lshl_b32 {t0}, s2, 5")
    P.I(f"s_add_u32 {t0}, {t0}, {WS_WT}")
    P.I(f"buffer_store_dwordx4 {v4(rb)}, v{rb+16}, {SS}, {t0} offen sc1", tag="wtst")
    P.I(f"buffer_store_dwordx4 {v4(rb+4)}, v{rb+16}, {SS}, {t0} offen offset:16 sc1", tag="wtst")
    return P
def wt_flag(P):
    P.wait("wtst")
    P.I(f"s_lshl_b32 {t0}, {sW}, 10")
    P.I(f"s_lshl_b32 {t1}, s2, 2")
    P.I(f"s_add_u32 {t0}, {t0}, {t1}")
    P.I(f"s_add_u32 {t0}, {t0}, {WS_FW}")
    flag_store(P, t0)

aC32, aS32, aN32, aC64, aS64, aN64, aT1C, aT1S, aT2C, aT2S = 176, 184, 192, 200, 208, 216, 224, 232, 240, 248
def fft_consts(P):
    c, g, w16 = "v56", "v57", "v58"
    P.I(f"v_and_b32 {c}, 15, v1")
    P.I(f"v_lshrrev_b32 {g}, 4, v1")
    P.I(f"v_cvt_f32_u32 {c}, {c}")
    P.I(f"v_cvt_f32_u32 {g}, {g}")
    P.I(f"s_lshl_b32 {t0}, {sW}, 4")
    P.I(f"v_cvt_f32_u32 {w16}, {t0}")
    def frag(f, base, consts, dc, ds, dn):
        for jj in range(4):
            for e in range(2):
                P.I(f"v_fmamk_f32 v{64+e}, {f}, {f2u(consts[2*jj+e])}, {base}")
            for e in range(2):
                P.I(f"v_cos_f32 v{66+e}, v{64+e}")
                P.I(f"v_sin_f32 v{68+e}, v{64+e}")
            P.I(f"v_cvt_pk_bf16_f32 v70, v66, v67")
            P.I(f"v_cvt_pk_bf16_f32 v71, v68, v69")
            P.I(f"v_accvgpr_write_b32 a{dc+jj}, v70")
            P.I(f"v_accvgpr_write_b32 a{ds+jj}, v71")
            P.I(f"v_xor_b32 v71, 0x80008000, v71")
            P.I(f"v_accvgpr_write_b32 a{dn+jj}, v71")
    for mb in range(2):
        P.I(f"v_add_f32 v60, {f2u(16.0*mb)}, {c}")
        P.I(f"v_mul_f32 v60, {f2u(1/32)}, v60")
        P.I(f"v_mul_f32 v61, 4.0, {g}")
        P.I(f"v_mul_f32 v61, v61, v60")
        frag("v60", "v61", [(j & 3) + 16 * (j >> 2) for j in range(8)], aC32 + 4*mb, aS32 + 4*mb, aN32 + 4*mb)
    P.I(f"v_add_f32 v60, {w16}, {c}")
    P.I(f"v_mul_f32 v60, {f2u(1/64)}, v60")
    P.I(f"v_mul_f32 v61, {f2u(8.0)}, {g}")
    P.I(f"v_mul_f32 v61, v61, v60")
    for ks in range(2):
        frag("v60", "v61", [32 * ks + j for j in range(8)], aC64 + 4*ks, aS64 + 4*ks, aN64 + 4*ks)
    P.I(f"v_fma_f32 v62, {g}, 4.0, {w16}")
    for mb in range(2):
        P.I(f"v_add_f32 v60, {f2u(16.0*mb)}, {c}")
        P.I(f"v_mul_f32 v60, {f2u(1/2048)}, v60")
        P.I(f"v_mul_f32 v61, v60, v62")
        for r in range(4):
            P.I(f"v_fmamk_f32 v64, v60, {f2u(float(r))}, v61")
            P.I(f"v_cos_f32 v66, v64")
            P.I(f"v_sin_f32 v68, v64")
            P.I(f"v_accvgpr_write_b32 a{aT1C+4*mb+r}, v66")
            P.I(f"v_accvgpr_write_b32 a{aT1S+4*mb+r}, v68")
    sc = 2.0 / (2048 * 512)
    P.I(f"s_cmp_eq_u32 s2, 255")
    P.I(f"s_mov_b32 {t1}, {f2u(sc)}")
    P.I(f"s_cselect_b32 {t0}, {f2u(sc/2)}, {t1}")
    P.I(f"v_add_f32 v60, {w16}, {c}")
    P.I(f"v_mul_f32 v60, {f2u(1/2048)}, v60")
    P.I(f"v_mul_f32 v61, 4.0, {g}")
    P.I(f"v_mul_f32 v61, v61, v60")
    for mb in range(2):
        for r in range(4):
            P.I(f"v_fmamk_f32 v64, v60, {f2u(float(16*mb+r))}, v61")
            P.I(f"v_cos_f32 v66, v64")
            P.I(f"v_sin_f32 v68, v64")
            P.I(f"v_mul_f32 v66, {t0}, v66")
            P.I(f"v_mul_f32 v68, {t0}, v68")
            P.I(f"v_accvgpr_write_b32 a{aT2C+4*mb+r}, v66")
            P.I(f"v_accvgpr_write_b32 a{aT2S+4*mb+r}, v68")

def prologue(P):
    P.I(f"""s_cmp_ge_u32 s2, 256
s_cbranch_scc1 L_end""")
    if cfg.stamps: P.I("s_memtime s[98:99]")
    P.I(f"""s_load_dwordx16 s[64:79], s[0:1], 0
s_load_dwordx2 s[36:37], s[0:1], 72
v_lshrrev_b32 v2, 6, v0
v_and_b32 v1, 63, v0
s_getpc_b64 s[4:5]
L_pc:
v_readfirstlane_b32 {sW}, v2
v_lshlrev_b32 v2, 4, v1
s_and_b32 {sJ}, s2, 7
s_lshr_b32 {sI}, s2, 3
s_mov_b32 {sSPIN}, 400000""")
    P.I(f"""s_and_b32 {t0}, {sI}, 7
s_lshl_b32 {t0}, {t0}, 2
s_add_u32 {t0}, {t0}, {sW}
s_lshl_b32 {t0}, {t0}, 10
v_add_u32 v12, {t0}, v2
v_min_u32 v12, L_code_end-L_pc-16, v12
global_load_dwordx4 v[44:47], v12, s[4:5]
v_add_u32 v12, 32768, v12
v_min_u32 v12, L_code_end-L_pc-16, v12
global_load_dwordx4 v[40:43], v12, s[4:5]""")
    if cfg.mapping == 0:
        P.I(f"""s_and_b32 {sBROT}, {sI}, 7
s_and_b32 {t0}, {sJ}, 3
s_lshr_b32 {t1}, {sI}, 3
s_lshl_b32 {sPROT}, {t1}, 1
s_lshr_b32 {sMG}, {sJ}, 2
s_lshl_b32 {sMG}, {sMG}, 2
s_add_u32 {sMG}, {sMG}, {t1}
s_mul_i32 {sN}, {t0}, 7
s_add_u32 {sN}, {sN}, {sBROT}
s_cmp_eq_u32 {sBROT}, 7
s_cselect_b32 {sN}, {t0}, {sN}
s_cselect_b32 {sDFT}, 1, 0
s_cselect_b32 {sPROT}, 0, {sPROT}""")
    P.I("s_waitcnt lgkmcnt(0)")
    P.I(f"s_load_dword {sTAG}, s[36:37], {WS_EPOCH}")
    for srd, src, size in ((8, 64, 2097152), (24, 66, 1052672), (28, 68, 1052672), (12, 72, 1835008), (16, 74, 1835008),
                           (20, 76, 1835008), (32, 78, 2097152)):
        P.I(f"s_mov_b32 s{srd}, s{src}\ns_mov_b32 s{srd+1}, s{src+1}\ns_mov_b32 s{srd+2}, {size}\ns_mov_b32 s{srd+3}, 0x20000")
    P.I(f"s_mov_b32 s38, {WS_SIZE}\ns_mov_b32 s39, 0x20000")
    stats_loads(P)
    P.I(f"""s_lshl_b32 {t0}, {sPROT}, 3
v_add_u32 v8, {t0}, v1
v_and_b32 v8, 63, v8
v_lshlrev_b32 v8, 4, v8
v_add_u32 v9, {65536-1040}, v8
v_add_u32 v10, {2*(65536-1040)}, v8
v_add_u32 v11, {3*(65536-1040)}, v8
s_and_b32 {t0}, {sW}, 1
s_lshl_b32 {t0}, {t0}, 20
s_lshr_b32 {t1}, {sW}, 1
s_lshl_b32 {t1}, {t1}, 18
s_or_b32 {sXW}, {t0}, {t1}
s_lshl_b32 {t0}, {sMG}, 13
s_add_u32 {sXW}, {sXW}, {t0}
s_mul_i32 {sXM}, {sW}, {8*1040}""")
    P.I(f"""v_and_b32 v3, 31, v1
v_mul_u32_u24 v3, 1040, v3
v_lshrrev_b32 v4, 5, v1
v_lshl_add_u32 v3, v4, 4, v3
v_add_u32 v4, {2*XS}, v3""")

def tag_ready(P):
    P.I("s_waitcnt lgkmcnt(0)")
    P.I(f"s_mul_i32 {sTAG}, {sTAG}, 0x9E3779B1")
    P.I(f"s_add_u32 {sTAG}, {sTAG}, 0x7F4A7C15")

def ffn_phase1(P):
    P.I(f"""v_lshrrev_b32 v12, 3, v1
v_and_b32 v13, 7, v1
v_and_b32 v14, 2, v12
v_xor_b32 v13, v13, v14
v_mul_u32_u24 v12, 3584, v12
v_lshl_add_u32 v5, v13, 4, v12
v_xor_b32 v13, 4, v13
v_lshl_add_u32 v6, v13, 4, v12
s_mul_i32 s67, {sW}, {16*3584}
s_lshl_b32 {t0}, {sN}, 7
s_add_u32 s67, s67, {t0}
s_lshl_b32 s68, {sW}, 11""")
    P.ext(w_dma(0)); P.ext(x_dma(0)); P.ext(w_dma(1))
    if cfg.dbg: stamp(P)
    tag_ready(P)
    if cfg.dbg: stamp(P)
    stats_compute(P)
    if cfg.dbg: stamp(P)
    P.ext(w_dma(2))
    P.ext(wt_loads(128))
    if cfg.dbg: stamp(P)
    P.I(f"""v_and_b32 v12, 1, v1
s_lshl_b32 {t0}, {sW}, 1
v_add_u32 v12, {t0}, v12
v_bfe_u32 v13, v1, 3, 1
v_lshlrev_b32 v13, 1, v13
v_xor_b32 v12, v12, v13
v_bfe_u32 v13, v1, 4, 1
v_lshlrev_b32 v14, 2, v13
v_xor_b32 v12, v12, v14
v_lshlrev_b32 v12, 4, v12
v_lshl_add_u32 v12, v13, 13, v12
v_bfe_u32 v13, v1, 1, 1
v_lshl_add_u32 v12, v13, 3, v12
v_bfe_u32 v13, v1, 2, 2
v_lshl_add_u32 v12, v13, 7, v12
v_lshrrev_b32 v13, 5, v1
v_lshl_add_u32 v12, v13, 10, v12
v_add_u32 v7, {WRING}, v12""")
    for k in range(4): P.I(f"v_mov_b32 v{192+k}, 0x3f803f80")
    P.I(f"""s_lshl_b32 {t0}, {sMG}, 3
s_mul_i32 {sHB}, {t0}, 112
s_lshl_b32 {t0}, {sN}, 2
s_add_u32 {sHB}, {sHB}, {t0}
s_add_u32 {sHB}, {sHB}, {sW}
s_lshl_b32 {sHB}, {sHB}, 10
s_add_u32 {sHB}, {sHB}, {WS_H}""")
    fft_consts(P)
    if cfg.dbg: stamp(P)
    P.ext(wt_store(128))
    stamp(P)
    G = cfg.G
    for p in range(8):
        P.wait(f"P{p}", *( ["X0"] if p == 0 else []))
        P.I("s_barrier")
        if p == 0: stamp(P)
        if 1 <= p <= 5: P.ext(w_dma(p + 2))
        if p == 5: P.ext(x_dma(1))
        if p == 6:
            P.ext(x_dma(2))
        for t in range(4):
            for u in range(2):
                P.I(f"ds_read_b64_tr_b16 a[{16*p+4*t+2*u}:{16*p+4*t+2*u+1}], v7 offset:{(p%3)*16384 + t*2048 + u*512}")
            tx, reg, tg = xfrag_read(0, 4 * p + t); P.I(tx, tag=tg)
        if p == 7:
            P.I(f"v_and_b32 v12, 31, v1")
            P.I(f"v_lshlrev_b32 v12, 4, v12")
            ld = []
            for b in range(8):
                block_T(P, f"s{80+b}" if not cfg.stamps else f"s{80+b}", b)
                P.I(f"s_lshl_b32 s{80+b}, s{80+b}, 9")
                P.I(f"s_add_u32 s{80+b}, s{80+b}, {WS_ST}")
                ld.append(f"buffer_load_dwordx4 {v4(ST+4*b)}, v12, {SS}, s{80+b} offen sc1")
            for l in ld: P.I(l)
            P.I("s_waitcnt lgkmcnt(0)")
            P.wait("X1")
            P.I("s_barrier")
            for q in range(2 * G):
                assert (32 + q) % (3 * G) not in [(28 + t) % (3 * G) for t in range(4)]
                tx, reg, tg = xfrag_read(1, q); P.I(tx, tag=tg)
        for t in range(4):
            q = 4 * p + t
            _, reg, _ = xfrag_read(0, q)
            P.I(f"v_mfma_f32_32x32x16_bf16 {v16(ACC[0])}, {a4(4*q)}, {v4(reg)}, {'0' if q == 0 else v16(ACC[0])}")
            P.I(f"v_mfma_f32_32x32x16_bf16 {v16(CS)}, {a4(4*q)}, v[192:195], {'0' if q == 0 else v16(CS)}")
        if p < 7: P.I("s_waitcnt lgkmcnt(0)")
    stamp(P)
    wt_flag(P)
    poll(P, ld, [f"v{ST+4*b+2}" for b in range(8)], pre_issued_tag=True)
    stamp(P)
    for b in range(1, 8):
        P.ext(gemm1_block(b, False, ffn_epilogue(b - 1)))
    P.I("s_barrier")
    stamp(P)
    P.ext(ffn_epilogue(7))
    P.wait("hst")
    P.I(f"""s_lshl_b32 {t0}, {sMG}, 7
s_lshl_b32 {t1}, {sN}, 2
s_add_u32 {t0}, {t0}, {t1}
s_add_u32 {t0}, {t0}, {sW}
s_lshl_b32 {t0}, {t0}, 2
s_add_u32 {t0}, {t0}, {WS_FH}""")
    flag_store(P, t0)
    stamp(P)

def dft_phase1(P):
    P.ext(x_dma(0))
    tag_ready(P)
    stats_compute(P)
    P.ext(x_dma(1));
    P.ext(wt_loads(96))
    P.I(f"""v_and_b32 v12, 15, v1
v_lshlrev_b32 v5, 13, v12
v_bfe_u32 v13, v1, 4, 1
v_lshl_add_u32 v5, v13, 12, v5
v_lshrrev_b32 v14, 5, v1
v_lshl_add_u32 v5, v14, 5, v5
v_lshlrev_b32 v7, 4, v14
s_lshl_b32 {t0}, {sN}, 2
s_add_u32 {t0}, {t0}, {sW}
s_lshl_b32 {t1}, {t0}, 17
s_lshl_b32 {t2}, {sMG}, 9
s_add_u32 {sHB}, {t1}, {t2}
s_add_u32 {sHB}, {sHB}, {WS_X1}
s_lshl_b32 {t0}, {t0}, 4
s_add_u32 {t0}, {t0}, 1
v_add_u32 v12, {t0}, v12
v_cvt_f32_u32 v12, v12
v_mul_f32 v12, {f2u(1/512)}, v12
v_cvt_f32_u32 v13, v13
v_mul_f32 v13, {f2u(0.25)}, v13
v_cvt_f32_u32 v14, v14
v_mul_f32 v14, {f2u(8.0)}, v14
v_fmac_f32 v13, v14, v12""")
    fft_consts(P)
    P.ext(wt_store(96))
    P.ext(x_dma(2))
    stamp(P)
    for q in range(32):
        for jj in range(4):
            for e in range(2):
                P.I(f"v_fmamk_f32 v{120+e}, v12, {f2u(float(16*q+2*jj+e))}, v13")
            for e in range(2):
                P.I(f"v_cos_f32 v{122+e}, v{120+e}")
            P.I(f"v_cvt_pk_bf16_f32 v{128+4*q+jj}, v122, v123")
    stamp(P)
    wt_flag(P)
    P.I(f"""s_lshl_b32 {t0}, {sMG}, 12
s_add_u32 s80, {t0}, {WS_ST}
v_lshlrev_b32 v12, 4, v0""")
    poll(P, [f"buffer_load_dwordx4 v[96:99], v12, {SS}, s80 offen sc1"], ["v98"])
    P.I(f"""v_rsq_f32 v97, v97
v_lshrrev_b32 v13, 5, v0
v_subrev_u32 v13, {sBROT}, v13
v_and_b32 v13, 7, v13
v_and_b32 v14, 31, v0
v_lshl_add_u32 v13, v13, 5, v14
v_lshlrev_b32 v13, 2, v13
v_add_u32 v13, {RTAB}, v13
v_add_u32 v7, {RTAB}, v7
ds_write_b32 v13, v97""")
    P.I("s_waitcnt lgkmcnt(0)")
    P.wait("X0")
    P.I("s_barrier")
    stamp(P)
    for q in range(2 * cfg.G):
        tx, reg, tg = xfrag_read(0, q); P.I(tx, tag=tg)
    stamp(P)
    for b in range(8):
        P.ext(gemm1_block(b, True, dft_epilogue(b - 1) if b else None))
    P.I("s_barrier")
    stamp(P)
    P.ext(dft_epilogue(7))
    P.wait("hst")
    P.I(f"""s_lshl_b32 {t0}, {sN}, 2
s_add_u32 {t0}, {t0}, {sW}
s_lshl_b32 {t0}, {t0}, 3
s_add_u32 {t0}, {t0}, {sMG}
s_lshl_b32 {t0}, {t0}, 2
s_add_u32 {t0}, {t0}, {WS_FX}""")
    flag_store(P, t0)
    stamp(P)

def mf16(P, d, a, b, first):
    P.I(f"v_mfma_f32_16x16x32_bf16 {v4(d)}, {a}, {b}, {'0' if first else v4(d)}")

def colfft(P):
    P.I(f"""s_lshr_b32 {t0}, s2, 4
s_lshl_b32 {t0}, {t0}, 3
s_lshl_b32 {t1}, {sW}, 1
s_add_u32 {t0}, {t0}, {t1}
s_lshl_b32 {t0}, {t0}, 2
s_add_u32 s80, {t0}, {WS_FX}
s_lshr_b32 {t0}, s2, 6
s_lshl_b32 {t0}, {t0}, 10
s_add_u32 s81, {t0}, {WS_FW}
v_and_b32 v12, 1, v1
v_lshlrev_b32 v12, 2, v12
v_lshlrev_b32 v13, 2, v0""")
    poll(P, [f"buffer_load_dword v14, v12, {SS}, s80 offen sc1", f"buffer_load_dword v15, v13, {SS}, s81 offen sc1"], ["v14", "v15"])
    stamp(P)
    P.I(f"""v_and_b32 v12, 15, v1
v_lshrrev_b32 v13, 4, v1
s_lshl_b32 {t0}, {sW}, 10
v_lshl_add_u32 v3, v12, 6, {t0}
v_lshl_add_u32 v3, v13, 4, v3
v_lshlrev_b32 v4, 5, v0
s_lshl_b32 {t0}, s2, 13
s_add_u32 {t1}, {t0}, {WS_X1}
s_add_u32 {t2}, {t0}, {WS_X1+4096}
s_add_u32 {t3}, {t0}, {WS_WT}""")
    P.I(f"buffer_load_dwordx4 v[16:19], v3, {SS}, {t1} offen sc1")
    P.I(f"buffer_load_dwordx4 v[20:23], v3, {SS}, {t2} offen sc1")
    P.I(f"buffer_load_dwordx4 v[24:27], v4, {SS}, {t3} offen sc1")
    P.I(f"buffer_load_dwordx4 v[28:31], v4, {SS}, {t3} offen offset:16 sc1")
    P.I(f"""v_mul_u32_u24 v5, {ERS}, v12
v_lshl_add_u32 v6, v13, 4, v5
v_lshl_add_u32 v5, v13, 3, v5
s_lshl_b32 {t0}, {sW}, 5
v_add_u32 v5, {t0}, v5""")
    for k in range(32): P.I(f"v_accvgpr_read_b32 v{48+k}, a{aT1C+k}")
    T1C, T1S, T2C, T2S = 48, 56, 64, 72
    D = lambda part, mb: 32 + 8 * part + 4 * mb
    Xr, Xi = v4(16), v4(20)
    for mb in range(2):
        mf16(P, D(0, mb), Xr, a4(aC32 + 4*mb), True)
        mf16(P, D(1, mb), Xi, a4(aC32 + 4*mb), True)
    for mb in range(2):
        mf16(P, D(0, mb), Xi, a4(aS32 + 4*mb), False)
        mf16(P, D(1, mb), Xr, a4(aN32 + 4*mb), False)
    def cmul(cr, ci, conj):
        for mb in range(2):
            for r in range(4):
                P.I(f"v_mul_f32 v{88+4*mb+r}, v{D(0,mb)+r}, v{cr+4*mb+r}")
                P.I(f"v_mul_f32 v{96+4*mb+r}, v{D(1,mb)+r}, v{cr+4*mb+r}")
        s1, s2 = ("", "-") if conj else ("-", "")
        for mb in range(2):
            for r in range(4):
                P.I(f"v_fma_f32 v{88+4*mb+r}, {s1}v{D(1,mb)+r}, v{ci+4*mb+r}, v{88+4*mb+r}")
                P.I(f"v_fma_f32 v{96+4*mb+r}, {s2}v{D(0,mb)+r}, v{ci+4*mb+r}, v{96+4*mb+r}")
        for k in range(8): P.I(f"v_cvt_pk_bf16_f32 v{80+k}, v{88+2*k}, v{89+2*k}")
    def exchange(E):
        for part in range(2):
            for mb in range(2):
                k = 80 + 4 * part + 2 * mb
                P.I(f"ds_write_b64 v5, v[{k}:{k+1}] offset:{E + (part*32 + 16*mb)*ERS}")
        P.I("s_waitcnt lgkmcnt(0)")
        P.I("s_barrier")
        for ks in range(2):
            for mb in range(2):
                for part in range(2):
                    P.I(f"ds_read_b128 {v4(Y(part,mb,ks))}, v6 offset:{E + (part*32 + 16*mb)*ERS + ks*64}")
    Y = lambda part, mb, ks: 88 + 16 * ks + 8 * mb + 4 * part
    cmul(T1C, T1S, True)
    exchange(E1)
    for k in range(4):
        P.I(f"v_lshlrev_b32 v{120+2*k}, 16, v{24+k}")
        P.I(f"v_and_b32 v{121+2*k}, 0xffff0000, v{24+k}")
        P.I(f"v_lshlrev_b32 v{16+2*k}, 16, v{28+k}")
        P.I(f"v_and_b32 v{17+2*k}, 0xffff0000, v{28+k}")
    for ks in range(2):
        for mb in range(2):
            mf16(P, D(0, mb), a4(aC64 + 4*ks), v4(Y(0, mb, ks)), ks == 0)
            mf16(P, D(1, mb), a4(aC64 + 4*ks), v4(Y(1, mb, ks)), ks == 0)
        for mb in range(2):
            mf16(P, D(0, mb), a4(aS64 + 4*ks), v4(Y(1, mb, ks)), False)
            mf16(P, D(1, mb), a4(aN64 + 4*ks), v4(Y(0, mb, ks)), False)
    cmul(120, 16, False)
    exchange(E2)
    for ks in range(2):
        for mb in range(2):
            mf16(P, D(0, mb), v4(Y(0, mb, ks)), a4(aC64 + 4*ks), ks == 0)
            mf16(P, D(1, mb), v4(Y(1, mb, ks)), a4(aC64 + 4*ks), ks == 0)
        for mb in range(2):
            mf16(P, D(0, mb), v4(Y(1, mb, ks)), a4(aN64 + 4*ks), False)
            mf16(P, D(1, mb), v4(Y(0, mb, ks)), a4(aS64 + 4*ks), False)
    cmul(T2C, T2S, False)
    Ur, Ui = v4(80), v4(84)
    for sb in range(2):
        mf16(P, D(0, sb), a4(aC32 + 4*sb), Ur, True)
        mf16(P, D(1, sb), a4(aC32 + 4*sb), Ui, True)
    for sb in range(2):
        mf16(P, D(0, sb), a4(aN32 + 4*sb), Ui, False)
        mf16(P, D(1, sb), a4(aS32 + 4*sb), Ur, False)
    P.I(f"""s_lshl_b32 {t0}, s2, 13
s_add_u32 {t1}, {t0}, {WS_Z}
s_add_u32 {t2}, {t0}, {WS_Z+4096}""")
    for k in range(8): P.I(f"v_cvt_pk_bf16_f32 v{88+k}, v{32+2*k}, v{33+2*k}")
    P.I(f"buffer_store_dwordx4 v[88:91], v3, {SS}, {t1} offen sc1", tag="zst")
    P.I(f"buffer_store_dwordx4 v[92:95], v3, {SS}, {t2} offen sc1", tag="zst")
    P.wait("zst")
    P.I(f"""s_lshl_b32 {t0}, {sW}, 10
s_lshl_b32 {t1}, s2, 2
s_add_u32 {t0}, {t0}, {t1}
s_add_u32 {t0}, {t0}, {WS_FZ}""")
    flag_store(P, t0)
    stamp(P)

def kp_next(P, s):
    P.I(f"s_add_u32 {s}, {s}, 1")
    P.I(f"s_cmp_eq_u32 {s}, 14")
    P.I(f"s_cselect_b32 {s}, 0, {s}")

def gemm2(P):
    P.I(f"""s_lshl_b32 {sT0}, {sJ}, 2
s_lshr_b32 {t0}, {sI}, 3
s_add_u32 {sT0}, {sT0}, {t0}
s_lshl_b32 {sT0}, {sT0}, 1
s_and_b32 {sCT}, {sI}, 7
s_mul_i32 {sKP}, {sCT}, 7
s_lshr_b32 {sKP}, {sKP}, 2
s_lshl_b32 s82, {sW}, 15
s_add_u32 s82, s82, {STG}""")
    P.I(f"""v_lshrrev_b32 v12, 3, v1
v_and_b32 v13, 7, v1
v_and_b32 v14, 2, v12
v_lshlrev_b32 v14, 1, v14
v_xor_b32 v13, v13, v14
v_lshlrev_b32 v13, 4, v13
v_lshl_add_u32 v9, v12, 12, v13
v_lshl_add_u32 v5, v12, 10, v13
s_lshl_b32 {t0}, {sCT}, 7
v_add_u32 v5, {t0}, v5
v_add_u32 v6, {8192-1024}, v5
v_add_u32 v7, {2*(8192-1024)}, v5
v_add_u32 v8, {3*(8192-1024)}, v5""")
    P.I(f"""v_and_b32 v12, 1, v1
v_lshlrev_b32 v12, 2, v12
v_bfe_u32 v13, v1, 4, 1
v_lshl_or_b32 v12, v13, 1, v12
v_bfe_u32 v13, v1, 1, 1
v_or_b32 v12, v12, v13
v_lshlrev_b32 v12, 3, v12
v_bfe_u32 v13, v1, 3, 1
v_lshl_or_b32 v12, v13, 6, v12
v_bfe_u32 v13, v1, 2, 2
v_lshl_or_b32 v12, v13, 7, v12
v_lshrrev_b32 v13, 5, v1
v_lshl_or_b32 v12, v13, 10, v12
s_and_b32 {t0}, {sW}, 1
s_lshl_b32 {t0}, {t0}, 6
v_xor_b32 v10, {t0}, v12
v_xor_b32 v11, 64, v10
v_add_u32 v10, s82, v10
v_add_u32 v11, s82, v11
s_lshr_b32 {t0}, {sW}, 1
s_lshl_b32 {t0}, {t0}, 6
v_xor_b32 v3, {t0}, v12
v_add_u32 v3, {STG}, v3
v_add_u32 v4, 65536, v3""")
    P.I(f"s_mul_i32 s83, {sW}, {448*1024}")
    def wd_dma(pairs, s_kp):
        Q = Prog()
        for n, pr in enumerate(pairs):
            Q.I(f"s_lshl_b32 s84, {s_kp}, 15")
            Q.I(f"s_add_u32 s84, s84, s83")
            Q.I(f"s_add_u32 m0, s82, {n*4096}")
            kp_next(Q, s_kp)
            for r in range(4):
                Q.I(f"buffer_load_dwordx4 v{5+r}, {SD}, s84 offen offset:{r*1024} lds", tag=f"WD{pr}")
        return Q
    def wd_read(pairs):
        Q = Prog()
        for n, pr in enumerate(pairs):
            Q.wait(f"WD{pr}")
            for e in range(2):
                q = 2 * pr + e
                for cb in range(2):
                    for u in range(2):
                        Q.I(f"ds_read_b64_tr_b16 a[{8*q+4*cb+2*u}:{8*q+4*cb+2*u+1}], v{10+cb} offset:{n*4096 + e*2048 + u*512}")
        return Q
    P.I(f"s_mov_b32 s85, {sKP}")
    P.ext(wd_dma(range(8), "s85"))
    P.ext(wd_read(range(8)))
    P.I("s_waitcnt lgkmcnt(0)")
    P.ext(wd_dma(range(8, 14), "s85"))
    P.ext(wd_read(range(8, 14)))
    stamp(P)
    P.I(f"""s_lshr_b32 {t0}, {sT0}, 3
s_lshl_b32 {t0}, {t0}, 7
s_mul_i32 {t1}, {sW}, 28
s_add_u32 {t0}, {t0}, {t1}
s_lshl_b32 {t0}, {t0}, 2
s_add_u32 s80, {t0}, {WS_FH}
v_min_u32 v12, 27, v1
v_lshlrev_b32 v12, 2, v12""")
    poll(P, [f"buffer_load_dword v14, v12, {SS}, s80 offen sc1"], ["v14"])
    stamp(P)
    P.I(f"""s_lshr_b32 {t0}, {sW}, 1
s_add_u32 {t1}, {sT0}, {t0}
s_xor_b32 {t0}, {t0}, 1
s_add_u32 {t2}, {sT0}, {t0}
s_mul_i32 {t3}, {sW}, 28
s_mul_i32 s86, {t1}, 112
s_add_u32 s86, s86, {t3}
s_lshl_b32 s86, s86, 10
s_add_u32 s86, s86, {WS_H}
s_mul_i32 s87, {t2}, 112
s_add_u32 s87, s87, {t3}
s_lshl_b32 s87, s87, 10
s_add_u32 s87, s87, {WS_H}
s_mov_b32 s85, {sKP}""")
    HR = 224
    def h_loads(pr):
        Q = Prog()
        Q.I(f"s_lshl_b32 s84, s85, 11")
        Q.I(f"s_add_u32 s88, s84, s86")
        Q.I(f"s_add_u32 s89, s84, s87")
        kp_next(Q, "s85")
        for e in range(2):
            for tb in range(2):
                Q.I(f"buffer_load_dwordx4 {a4(HR + 16*(pr&1) + 8*e + 4*tb)}, v2, {SS}, s{88+tb} offen offset:{e*1024} sc1")
        return Q
    P.I(f"""v_and_b32 v12, 3, v1
v_bfe_u32 v13, v1, 4, 1
v_lshl_or_b32 v12, v13, 2, v12
v_bfe_u32 v13, v1, 2, 2
v_lshl_or_b32 v12, v13, 3, v12
v_lshlrev_b32 v15, 16, v12
v_lshrrev_b32 v13, 5, v1
v_lshl_or_b32 v15, v13, 5, v15
s_lshl_b32 {t1}, {t1}, 10
s_lshl_b32 {t0}, {sCT}, 7
s_add_u32 {t1}, {t1}, {t0}
s_and_b32 {t0}, {sW}, 1
s_lshl_b32 {t0}, {t0}, 6
s_add_u32 s90, {t1}, {t0}""")
    P.ext(h_loads(0)); P.ext(h_loads(1))
    Gp = Prog()
    Gp.I(f"""v_and_b32 v96, 3, v1
v_bfe_u32 v97, v1, 3, 1
v_lshl_or_b32 v96, v97, 2, v96
v_bfe_u32 v97, v1, 4, 1
v_lshl_or_b32 v96, v97, 3, v96
v_bfe_u32 v97, v1, 2, 1
v_lshl_or_b32 v96, v97, 4, v96
s_lshl_b32 s91, {sCT}, 6
s_and_b32 s92, {sW}, 1
s_lshl_b32 s92, s92, 5
s_add_u32 s91, s91, s92
v_add_u32 v96, s91, v96
v_cvt_f32_u32 v96, v96
v_mul_f32 v96, {f2u(1/512)}, v96
v_lshrrev_b32 v97, 5, v1
v_lshl_or_b32 v97, v97, 2, 1
v_cvt_f32_u32 v97, v97
v_mul_f32 v97, v97, v96""")
    for q in range(32):
        for jj in range(4):
            tb = 98 + 3 * (jj & 1)
            Gp.I(f"v_fmamk_f32 v{tb}, v96, {f2u(float(8*q+jj))}, v97")
            Gp.I(f"v_cos_f32 v{tb+1}, v{tb}")
            Gp.I(f"v_sin_f32 v{tb+2}, -v{tb}")
            Gp.I(f"v_cvt_pk_bf16_f32 v{128+4*q+jj}, v{tb+1}, v{tb+2}")
    M = Prog()
    zd = Prog()
    for pr in range(14):
        for e in range(2):
            q = 2 * pr + e
            for tb in range(2):
                for cb in range(2):
                    acc = 16 + 16 * (cb + 2 * tb)
                    M.I(f"v_mfma_f32_32x32x16_bf16 {v16(acc)}, {a4(8*q+4*cb)}, {a4(HR + 16*(pr&1) + 8*e + 4*tb)}, {'0' if q == 0 else v16(acc)}")
        if pr + 2 < 14: M.ext(h_loads(pr + 2))
        if pr == 11:
            M.I(f"buffer_load_dwordx4 v[112:115], v15, {SX}, s90 offen")
            M.I(f"buffer_load_dwordx4 v[116:119], v15, {SX}, s90 offen offset:16")
            M.I(f"""s_lshr_b32 {t0}, {sT0}, 4
s_lshl_b32 {t0}, {t0}, 10
s_lshl_b32 {t1}, {sW}, 8
s_add_u32 {t0}, {t0}, {t1}
s_add_u32 s80, {t0}, {WS_FZ}
v_lshlrev_b32 v12, 2, v1""")
            poll(M, [f"buffer_load_dword v14, v12, {SS}, s80 offen sc1"], ["v14"])
            M.I(f"""s_lshl_b32 {t0}, {sW}, 19
s_lshl_b32 {t1}, {sT0}, 6
s_add_u32 {t0}, {t0}, {t1}
s_add_u32 {t0}, {t0}, {WS_Z}""")
            M.I("s_waitcnt lgkmcnt(0)")
            for n in range(16):
                M.I(f"s_add_u32 m0, s82, {n*1024}")
                M.I(f"s_add_u32 {t1}, {t0}, {n*8*4096}")
                M.I(f"buffer_load_dwordx4 v9, {SS}, {t1} offen sc1 lds", tag="ZD")
    M = spread(M, Gp, key=lambda i: i.kind == "mfma", first=0, last=96)
    P.ext(M)
    stamp(P)
    P.I(f"v_add_u32 v12, s82, v2")
    for beta in range(1, 4):
        for k in range(4):
            P.I(f"ds_write_b128 v12, {v4(16+16*beta+4*k)} offset:{16384 + (beta-1)*4096 + k*1024}")
    for beta in range(1, 4):
        P.I(f"s_xor_b32 {t0}, {sW}, {beta}")
        P.I(f"s_lshl_b32 {t0}, {t0}, 15")
        P.I(f"s_add_u32 {t0}, {t0}, {STG + 16384 + (beta-1)*4096}")
        P.I(f"v_add_u32 v{4+beta}, {t0}, v2")
    P.I("s_waitcnt lgkmcnt(0)")
    P.wait("ZD")
    P.I("s_barrier")
    P.I(f"s_or_b32 {t0}, s2, {sW}")
    P.I(f"s_cmp_lg_u32 {t0}, 0")
    P.I("s_cbranch_scc1 L_noep")
    P.I(f"s_mov_b32 {t0}, {WS_EPOCH}")
    flag_store(P, t0, "v12", "v13")
    P.I("L_noep:")
    stamp(P)
    ZR = 96
    def zread(q):
        Q = Prog()
        for u in range(2):
            r = ZR + 4 * (q & 3) + 2 * u
            Q.I(f"ds_read_b64_tr_b16 v[{r}:{r+1}], v{3 + (q >> 4)} offset:{((q >> 3) & 1)*32768 + (q & 7)*2048 + u*512}")
        return Q
    M = Prog()
    for q in range(3): M.ext(zread(q))
    for q in range(32):
        M.I(f"v_mfma_f32_32x32x16_bf16 {v16(80)}, {v4(128+4*q)}, {v4(ZR+4*(q&3))}, {'0' if q == 0 else v16(80)}")
        if q + 3 < 32: M.ext(zread(q + 3))
    X = Prog()
    for beta in range(1, 4):
        for k in range(4):
            X.I(f"ds_read_b128 {v4(16+16*beta+4*k)}, v{4+beta} offset:{k*1024}")
    for beta in range(1, 4):
        for r in range(16):
            X.I(f"v_add_f32 v{16+r}, v{16+r}, v{16+16*beta+r}")
    for r in range(16): X.I(f"v_mul_f32 v{32+r}, {f2u(-LOG2E)}, v{16+r}")
    for r in range(16): X.I(f"v_exp_f32 v{32+r}, v{32+r}")
    for r in range(16): X.I(f"v_add_f32 v{32+r}, 1.0, v{32+r}")
    for r in range(16): X.I(f"v_rcp_f32 v{32+r}, v{32+r}")
    for r in range(16): X.I(f"v_mul_f32 v{16+r}, v{16+r}, v{32+r}")
    for k in range(8):
        X.I(f"v_lshlrev_b32 v{32+2*k}, 16, v{112+k}")
        X.I(f"v_and_b32 v{33+2*k}, 0xffff0000, v{112+k}")
    M = spread(M, X, key=lambda i: i.kind == "mfma", first=0, last=32)
    P.ext(M)
    for r in range(16): P.I(f"v_fmac_f32 v{32+r}, v{16+r}, v{80+r}")
    for k in range(8): P.I(f"v_cvt_pk_bf16_f32 v{48+k}, v{32+2*k}, v{33+2*k}")
    P.I(f"buffer_store_dwordx4 v[48:51], v15, {SO}, s90 offen")
    P.I(f"buffer_store_dwordx4 v[52:55], v15, {SO}, s90 offen offset:16")
    stamp(P)

def dump_stamps(P):
    if not cfg.stamps: return
    P.I("s_waitcnt vmcnt(0) lgkmcnt(0)")
    for i in range(16):
        if i < 14:
            P.I(f"v_mov_b32 v{16+i}, {STR[i]}")
        else:
            P.I(f"v_mov_b32 v{16+i}, {sDFT}")
    P.I(f"s_lshl_b32 {t0}, s2, 8\ns_lshl_b32 {t1}, {sW}, 6\ns_add_u32 {t0}, {t0}, {t1}\ns_add_u32 {t0}, {t0}, {WS_DBG}")
    P.I("v_mov_b32 v12, 0\ns_mov_b64 exec, 1")
    for k in range(4):
        P.I(f"buffer_store_dwordx4 {v4(16+4*k)}, v12, {SS}, {t0} offen offset:{16*k}")

def build():
    P = Prog()
    prologue(P)
    P.I(f"s_cmp_eq_u32 {sDFT}, 1")
    P.I("s_cbranch_scc1 L_dft")
    base = nstamp[0]
    F = Prog(); ffn_phase1(F)
    F.I("s_waitcnt vmcnt(0) lgkmcnt(0)")
    D = Prog(); nstamp[0] = base
    D.I("L_dft:")
    dft_phase1(D)
    D.I("s_waitcnt vmcnt(0) lgkmcnt(0)")
    D.I("s_branch L_join")
    R = Prog()
    R.I("L_join:")
    R.assume()
    if cfg.stop_after != "p1":
        colfft(R)
        if cfg.stop_after != "fft":
            gemm2(R)
    dump_stamps(R)
    R.I("L_end:")
    R.I("s_endpgm")
    pro = resolve_waits(P.L + F.L + R.L)
    dall = resolve_waits(P.L + D.L)
    k = next(i for i, x in enumerate(dall) if x.text == "L_dft:")
    dpart = dall[k:]
    sl = resolve_waits(slow.L)
    L = pro + [Ins("s_nop 7")] + dpart + sl
    L, nops = pad_hazards(L)
    body = render(L)
    hdr = open("cdna_kernels/" + NAME + ".s.ref").read().split("; Override launch")[0]
    s = hdr + f"""; @launch grid=(256,1,1) block=(256,1,1) lds=163840
.amdgcn_target "amdgcn-amd-amdhsa--gfx950"
.text
.globl {NAME}_kernel
.p2align 8
.type {NAME}_kernel,@function
{NAME}_kernel:
{body}    s_endpgm
L_code_end:
.section .rodata,"a"
.p2align 6
.amdhsa_kernel {NAME}_kernel
  .amdhsa_next_free_vgpr 512
  .amdhsa_next_free_sgpr 102
  .amdhsa_accum_offset 256
  .amdhsa_group_segment_fixed_size 0
  .amdhsa_kernarg_size 80
  .amdhsa_user_sgpr_count 2
  .amdhsa_user_sgpr_kernarg_segment_ptr 1
  .amdhsa_system_sgpr_workgroup_id_x 1
.end_amdhsa_kernel
"""
    return s, len(L), nops

if __name__ == "__main__":
    out = sys.argv[1]
    for a in sys.argv[2:]:
        k, v = a.split("=")
        setattr(cfg, k, eval(v))
    s, n, nops = build()
    open(out, "w").write(s)
    print("instructions", n, "nops", nops)
```

```python
import sys, struct, math
sys.path.insert(0, "gen")
from asmgen import *

NAME = "recurrent_scan__spectral_gfnet__glu_gated_geglu__prompt"
def f2u(x): return "0x%08x" % struct.unpack("<I", struct.pack("<f", x))[0]

WS_EPOCH = 0
WS_FH = 0x1000; WS_FX = 0x2000; WS_FW = 0x3000; WS_FZ = 0x4000
WS_ST = 0x10000
WS_X1 = 0x100000; WS_WT = 0x300000; WS_Z = 0x500000; WS_H = 0x700000
WS_DBG = 0xF00000; WS_SIZE = 0x1000000
XS = 33280
WRING = 3 * XS
RTAB = 4 * XS
ERS = 144
E1 = 0; E2 = 2 * 32 * ERS
STG = 2 * E2
sW = "s3"
SX, SG, SU, SD, SR, SI, SO, SS = ("s[8:11]", "s[12:15]", "s[16:19]", "s[20:23]", "s[24:27]", "s[28:31]", "s[32:35]", "s[36:39]")
sTAG, sJ, sI, sN, sMG, sBROT, sPROT, sDFT = "s40", "s41", "s42", "s43", "s44", "s45", "s46", "s47"
sXW, sXM = "s48", "s49"
sHB = "s50"
sT0, sCT, sKP = "s51", "s52", "s53"
sSPIN = "s54"
t0, t1, t2, t3, t4, t5 = "s56", "s57", "s58", "s59", "s60", "s61"
LOG2E = 1.4426950408889634
K1 = 2 * 0.7978845608028654

class Cfg:
    stamps = False
    mapping = 0
    stop_after = None
    dbg = False
    dbgtime = False
    G = 4
cfg = Cfg()

nstamp = [0]
STR = ['s69','s70','s71','s72','s73','s74','s75','s76','s77','s78','s79','s6','s7','s55']
def stamp(P):
    if cfg.stamps:
        i = nstamp[0]; nstamp[0] += 1
        assert i < 14
        P.I("s_memtime s[94:95]")
        P.I("s_waitcnt lgkmcnt(0)")
        P.I(f"s_sub_u32 {STR[i]}, s94, s98")

def v4(b): return f"v[{b}:{b+3}]"
def a4(b): return f"a[{b}:{b+3}]"
def v16(b): return f"v[{b}:{b+15}]"

lblc = [0]
slow = Prog()
def poll(P, load_text, dst_regs, lanes_mask=None, pre_issued_tag=None):
    n = lblc[0]; lblc[0] += 1
    def cmp(Q):
        Q.I(f"v_cmp_ne_u32 vcc, {sTAG}, {dst_regs[0]}")
        for r in dst_regs[1:]:
            Q.I(f"v_cmp_ne_u32 s[62:63], {sTAG}, {r}")
            Q.I(f"s_or_b64 vcc, vcc, s[62:63]")
        if lanes_mask is not None:
            Q.I(f"s_and_b32 vcc_lo, vcc_lo, {lanes_mask & 0xffffffff:#x}")
            Q.I(f"s_and_b32 vcc_hi, vcc_hi, {lanes_mask >> 32:#x}")
        Q.I("s_cmp_lg_u64 vcc, 0")
    if not pre_issued_tag:
        for l in load_text: P.I(l)
    cmp(P)
    P.I(f"s_cbranch_scc1 L_slow{n}")
    P.I(f"L_back{n}:")
    S = Prog()
    S.assume()
    S.I(f"L_slow{n}:")
    S.I(f"s_cmp_eq_u32 {sSPIN}, 0")
    S.I(f"s_cbranch_scc1 L_back{n}")
    S.I(f"s_sub_u32 {sSPIN}, {sSPIN}, 1")
    S.I("s_sleep 2")
    for l in load_text: S.I(l)
    S.I("s_waitcnt vmcnt(0)")
    cmp(S)
    S.I(f"s_cbranch_scc1 L_slow{n}")
    S.I("s_nop 4")
    S.I(f"s_branch L_back{n}")
    slow.ext(S)

def flag_store(P, voff_expr_sgpr, tmpv="v14", tmpa="v15"):
    P.I(f"v_mov_b32 {tmpv}, {sTAG}")
    P.I(f"v_mov_b32 {tmpa}, 0")
    P.I("s_mov_b64 exec, 1")
    P.I(f"buffer_store_dword {tmpv}, {tmpa}, {SS}, {voff_expr_sgpr} offen sc1", tag="flag")
    P.I("s_mov_b64 exec, -1")

def block_T(P, dst, b):
    P.I(f"s_add_u32 {dst}, {sBROT}, {b}")
    P.I(f"s_and_b32 {dst}, {dst}, 7")
    P.I(f"s_lshl_b32 {t5}, {sMG}, 3")
    P.I(f"s_or_b32 {dst}, {dst}, {t5}")

def x_dma(b):
    P = Prog(); slot = (b % 4) * XS
    P.I(f"s_add_u32 s64, {sBROT}, {b}")
    P.I(f"s_and_b32 s64, s64, 7")
    P.I(f"s_lshl_b32 s64, s64, 10")
    P.I(f"s_add_u32 s64, s64, {sXW}")
    for a in range(2):
        P.I(f"s_add_u32 m0, {sXM}, {slot + a*4*1040}")
        if a: P.I(f"s_add_u32 s64, s64, {8*65536}")
        for r in range(4):
            P.I(f"buffer_load_dwordx4 v{8+r}, {SX}, s64 offen offset:{r*1040} lds", tag=f"X{b}")
    return P

def w_dma(p):
    P = Prog(); slot = WRING + (p % 3) * 16384
    P.I(f"s_add_u32 {t0}, {sPROT}, {p}")
    P.I(f"s_and_b32 {t0}, {t0}, 7")
    P.I(f"s_mul_i32 {t0}, {t0}, {64*3584}")
    P.I(f"s_add_u32 {t0}, {t0}, s67")
    P.I(f"s_add_u32 {t1}, {t0}, {8*3584}")
    for mtx, srd, vo in ((0, SG, "v5"), (1, SU, "v6")):
        for e in range(2):
            P.I(f"s_add_u32 m0, s68, {slot + mtx*8192 + e*1024}")
            P.I(f"buffer_load_dwordx4 {vo}, {srd}, {t1 if e else t0} offen lds", tag=f"P{p}")
    return P

ACC = [16, 32]
RING = 48
def xfrag_read(b, q):
    G = cfg.G; NR = 3 * G
    gq = b * 32 + q
    reg = RING + 4 * (gq % NR)
    slot = b % 4
    base = "v3" if slot < 2 else "v4"
    return f"ds_read_b128 {v4(reg)}, {base} offset:{(slot & 1) * XS + q * 32}", reg, f"xf{gq // G}"

def gemm1_block(b, dft, epi, first_reads_done=True):
    G = cfg.G
    M = Prog()
    acc = ACC[b & 1]
    for q in range(32):
        if q % G == 0:
            M.wait(f"xf{(b*32+q)//G}", lds=True)
        _, reg, _ = xfrag_read(b, q)
        c = "0" if q == 0 else v16(acc)
        if dft:
            M.I(f"v_mfma_f32_32x32x16_bf16 {v16(acc)}, {v4(reg)}, {v4(128+4*q)}, {c}")
        else:
            M.I(f"v_mfma_f32_32x32x16_bf16 {v16(acc)}, {a4(4*q)}, {v4(reg)}, {c}")
        nq = q + 2 * G
        if q == 23 - G and b < 7:
            M.wait(f"X{b+1}")
            M.I("s_barrier")
        if nq < 32:
            t, _, tg = xfrag_read(b, nq); M.I(t, tag=tg)
        elif b < 7:
            t, _, tg = xfrag_read(b + 1, nq - 32); M.I(t, tag=tg)
    ismf = lambda i: i.kind == "mfma"
    if b + 2 <= 7 and b >= 1:
        M = spread(M, x_dma(b + 2), key=ismf, first=1, last=31)
    if epi is not None:
        M = spread(M, epi, key=ismf, first=2, last=32)
    return M

CS = 160
ST = 96
def ffn_epilogue(b):
    P = Prog(); acc = ACC[b & 1]
    m, V = f"v{ST+4*b}", f"v{ST+4*b+1}"
    vr, vA, vB, vN = "v152", "v153", "v154", "v155"
    T = [f"v{128+i}" for i in range(8)]
    out = 144 + 4 * (b & 1)
    P.I(f"v_rsq_f32 {vr}, {V}")
    P.I(f"v_mul_f32 {vN}, -1.0, {m}")
    P.I(f"v_mul_f32 {vA}, {f2u(-K1*LOG2E)}, {vr}")
    P.I(f"v_mul_f32 {vB}, {vr}, {vr}")
    for r in range(16): P.I(f"v_fmac_f32 v{acc+r}, {vN}, v{CS+r}")
    P.I(f"v_mul_f32 {vB}, {f2u(0.044715)}, {vB}")
    P.I(f"v_mul_f32 {vB}, {vB}, {vA}")
    for r in range(8): P.I(f"v_mul_f32 {T[r]}, v{acc+r}, v{acc+r}")
    for r in range(8): P.I(f"v_fma_f32 {T[r]}, {vB}, {T[r]}, {vA}")
    for r in range(8): P.I(f"v_mul_f32 {T[r]}, v{acc+r}, {T[r]}")
    for r in range(8):
        P.I(f"v_exp_f32 {T[r]}, {T[r]}")
        P.I(f"v_mul_f32 v{acc+8+r}, v{acc+r}, v{acc+8+r}")
    for r in range(8): P.I(f"v_fma_f32 {T[r]}, {T[r]}, {V}, {V}")
    for r in range(8): P.I(f"v_rcp_f32 {T[r]}, {T[r]}")
    for r in range(8): P.I(f"v_mul_f32 {T[r]}, v{acc+8+r}, {T[r]}")
    for r in range(4): P.I(f"v_cvt_pk_bf16_f32 v{out+r}, {T[2*r]}, {T[2*r+1]}")
    P.I(f"s_add_u32 s65, {sBROT}, {b}")
    P.I(f"s_and_b32 s65, s65, 7")
    P.I(f"s_mul_i32 s65, s65, {112*1024}")
    P.I(f"s_add_u32 s65, s65, {sHB}")
    P.I(f"buffer_store_dwordx4 {v4(out)}, v2, {SS}, s65 offen sc1", tag="hst")
    return P

def dft_epilogue(b):
    P = Prog(); acc = ACC[b & 1]
    rr = 96; out = 112
    for k in range(4):
        P.I(f"ds_read_b128 {v4(rr+4*k)}, v7 offset:{b*128 + k*32}")
    for r in range(16): P.I(f"v_mul_f32 v{acc+r}, v{acc+r}, v{rr+r}")
    for r in range(8): P.I(f"v_cvt_pk_bf16_f32 v{out+r}, v{acc+2*r}, v{acc+2*r+1}")
    P.I(f"s_add_u32 s65, {sBROT}, {b}")
    P.I(f"s_and_b32 s65, s65, 7")
    P.I(f"s_lshl_b32 s65, s65, 6")
    P.I(f"s_add_u32 s65, s65, {sHB}")
    P.I(f"buffer_store_dwordx4 {v4(out)}, v5, {SS}, s65 offen sc1", tag="hst")
    P.I(f"buffer_store_dwordx4 {v4(out+4)}, v5, {SS}, s65 offen offset:16 sc1", tag="hst")
    return P

def reduce64(P, regs, sdst):
    for ctl in ("row_shr:1", "row_shr:2", "row_shr:4", "row_shr:8"):
        for r in regs: P.I(f"v_add_f32_dpp {r}, {r}, {r} {ctl} row_mask:0xf bank_mask:0xf bound_ctrl:0")
    for r in regs: P.I(f"v_add_f32_dpp {r}, {r}, {r} row_bcast:15 row_mask:0xa bank_mask:0xf")
    for r in regs: P.I(f"v_add_f32_dpp {r}, {r}, {r} row_bcast:31 row_mask:0xc bank_mask:0xf")
    for r, s in zip(regs, sdst): P.I(f"v_readlane_b32 {s}, {r}, 63")

def stats_loads(P):
    P.I(f"""s_and_b32 {t0}, s2, 1
s_lshl_b32 {t0}, {t0}, 4
s_lshr_b32 {t1}, {sW}, 1
s_lshl_b32 {t1}, {t1}, 3
s_or_b32 {t0}, {t0}, {t1}
s_and_b32 {t1}, s2, 2
s_lshl_b32 {t1}, {t1}, 1
s_or_b32 {t0}, {t0}, {t1}
s_and_b32 {t1}, {sW}, 1
s_lshl_b32 {t1}, {t1}, 1
s_or_b32 {t0}, {t0}, {t1}
s_lshl_b32 {t0}, {t0}, 16
s_lshr_b32 {t1}, s2, 2
s_lshl_b32 {t1}, {t1}, 10
s_add_u32 {t0}, {t0}, {t1}
s_add_u32 {t1}, {t0}, 65536""")
    P.I(f"buffer_load_dwordx4 v[48:51], v2, {SX}, {t0} offen")
    P.I(f"buffer_load_dwordx4 v[52:55], v2, {SX}, {t1} offen")

def stats_compute(P):
    for e in range(2):
        for k in range(4):
            P.I(f"v_lshlrev_b32 v{56+8*e+2*k}, 16, v{48+4*e+k}")
            P.I(f"v_and_b32 v{57+8*e+2*k}, 0xffff0000, v{48+4*e+k}")
    for e in range(2): P.I(f"v_add_f32 v{72+e}, v{56+8*e}, v{57+8*e}")
    for k in range(2, 8):
        for e in range(2): P.I(f"v_add_f32 v{72+e}, v{72+e}, v{56+8*e+k}")
    reduce64(P, ["v72", "v73"], [t0, t1])
    for e, s in ((0, t0), (1, t1)):
        P.I(f"v_mov_b32 v{74+e}, {s}")
        P.I(f"v_mul_f32 v{74+e}, {f2u(1/512)}, v{74+e}")
    for k in range(8):
        for e in range(2): P.I(f"v_sub_f32 v{56+8*e+k}, v{56+8*e+k}, v{74+e}")
    for e in range(2): P.I(f"v_mul_f32 v{72+e}, v{56+8*e}, v{56+8*e}")
    for k in range(1, 8):
        for e in range(2): P.I(f"v_fmac_f32 v{72+e}, v{56+8*e+k}, v{56+8*e+k}")
    reduce64(P, ["v72", "v73"], [t0, t1])
    P.I(f"v_mov_b32 v77, {t0}")
    P.I(f"v_mov_b32 v78, {t1}")
    P.I("v_cmp_eq_u32 vcc, 0, v1")
    P.I("v_cndmask_b32 v76, v75, v74, vcc")
    P.I("v_cndmask_b32 v77, v78, v77, vcc")
    P.I(f"v_mov_b32 v79, {f2u(1e-5)}")
    P.I(f"v_fmamk_f32 v77, v77, {f2u(1/512)}, v79")
    P.I(f"v_mov_b32 v78, {sTAG}")
    P.I(f"v_mov_b32 v79, {sTAG}")
    P.I(f"s_lshl_b32 {t0}, s2, 7")
    P.I(f"s_lshl_b32 {t1}, {sW}, 5")
    P.I(f"s_add_u32 {t0}, {t0}, {t1}")
    P.I(f"s_add_u32 {t0}, {t0}, {WS_ST}")
    P.I("s_mov_b64 exec, 3")
    P.I(f"buffer_store_dwordx4 v[76:79], v2, {SS}, {t0} offen sc1", tag="stst")
    P.I("s_mov_b64 exec, -1")

def wt_loads(rb):
    P = Prog()
    P.I(f"v_lshl_add_u32 v{rb+16}, v0, 1, 2")
    P.I(f"""s_lshr_b32 {t0}, s2, 4
s_lshl_b32 {t0}, {t0}, 7
s_and_b32 {t1}, s2, 15
s_add_u32 {t0}, {t0}, {t1}
s_mul_i32 {t0}, {t0}, 514""")
    for idx in range(8):
        mb, r = idx >> 2, idx & 3
        P.I(f"s_add_u32 {t1}, {t0}, {mb*16*514 + r*32*514}")
        P.I(f"buffer_load_ushort v{rb+idx}, v{rb+16}, {SR}, {t1} offen")
        P.I(f"buffer_load_ushort v{rb+8+idx}, v{rb+16}, {SI}, {t1} offen")
    return P
def wt_store(rb):
    P = Prog()
    for k in range(8):
        P.I(f"v_lshl_or_b32 v{rb+k}, v{rb+2*k+1}, 16, v{rb+2*k}")
    P.I(f"v_lshlrev_b32 v{rb+16}, 13, v0")
    P.I(f"s_lshl_b32 {t0}, s2, 5")
    P.I(f"s_add_u32 {t0}, {t0}, {WS_WT}")
    P.I(f"buffer_store_dwordx4 {v4(rb)}, v{rb+16}, {SS}, {t0} offen sc1", tag="wtst")
    P.I(f"buffer_store_dwordx4 {v4(rb+4)}, v{rb+16}, {SS}, {t0} offen offset:16 sc1", tag="wtst")
    return P
def wt_flag(P):
    P.wait("wtst")
    P.I(f"s_lshl_b32 {t0}, {sW}, 10")
    P.I(f"s_lshl_b32 {t1}, s2, 2")
    P.I(f"s_add_u32 {t0}, {t0}, {t1}")
    P.I(f"s_add_u32 {t0}, {t0}, {WS_FW}")
    flag_store(P, t0)

aC32, aS32, aN32, aC64, aS64, aN64, aT1C, aT1S, aT2C, aT2S = 176, 184, 192, 200, 208, 216, 224, 232, 240, 248
def fft_consts(P):
    c, g, w16 = "v56", "v57", "v58"
    P.I(f"v_and_b32 {c}, 15, v1")
    P.I(f"v_lshrrev_b32 {g}, 4, v1")
    P.I(f"v_cvt_f32_u32 {c}, {c}")
    P.I(f"v_cvt_f32_u32 {g}, {g}")
    P.I(f"s_lshl_b32 {t0}, {sW}, 4")
    P.I(f"v_cvt_f32_u32 {w16}, {t0}")
    def frag(f, base, consts, dc, ds, dn):
        for jj in range(4):
            for e in range(2):
                P.I(f"v_fmamk_f32 v{64+e}, {f}, {f2u(consts[2*jj+e])}, {base}")
            for e in range(2):
                P.I(f"v_cos_f32 v{66+e}, v{64+e}")
                P.I(f"v_sin_f32 v{68+e}, v{64+e}")
            P.I(f"v_cvt_pk_bf16_f32 v70, v66, v67")
            P.I(f"v_cvt_pk_bf16_f32 v71, v68, v69")
            P.I(f"v_accvgpr_write_b32 a{dc+jj}, v70")
            P.I(f"v_accvgpr_write_b32 a{ds+jj}, v71")
            P.I(f"v_xor_b32 v71, 0x80008000, v71")
            P.I(f"v_accvgpr_write_b32 a{dn+jj}, v71")
    for mb in range(2):
        P.I(f"v_add_f32 v60, {f2u(16.0*mb)}, {c}")
        P.I(f"v_mul_f32 v60, {f2u(1/32)}, v60")
        P.I(f"v_mul_f32 v61, 4.0, {g}")
        P.I(f"v_mul_f32 v61, v61, v60")
        frag("v60", "v61", [(j & 3) + 16 * (j >> 2) for j in range(8)], aC32 + 4*mb, aS32 + 4*mb, aN32 + 4*mb)
    P.I(f"v_add_f32 v60, {w16}, {c}")
    P.I(f"v_mul_f32 v60, {f2u(1/64)}, v60")
    P.I(f"v_mul_f32 v61, {f2u(8.0)}, {g}")
    P.I(f"v_mul_f32 v61, v61, v60")
    for ks in range(2):
        frag("v60", "v61", [32 * ks + j for j in range(8)], aC64 + 4*ks, aS64 + 4*ks, aN64 + 4*ks)
    P.I(f"v_fma_f32 v62, {g}, 4.0, {w16}")
    for mb in range(2):
        P.I(f"v_add_f32 v60, {f2u(16.0*mb)}, {c}")
        P.I(f"v_mul_f32 v60, {f2u(1/2048)}, v60")
        P.I(f"v_mul_f32 v61, v60, v62")
        for r in range(4):
            P.I(f"v_fmamk_f32 v64, v60, {f2u(float(r))}, v61")
            P.I(f"v_cos_f32 v66, v64")
            P.I(f"v_sin_f32 v68, v64")
            P.I(f"v_accvgpr_write_b32 a{aT1C+4*mb+r}, v66")
            P.I(f"v_accvgpr_write_b32 a{aT1S+4*mb+r}, v68")
    sc = 2.0 / (2048 * 512)
    P.I(f"s_cmp_eq_u32 s2, 255")
    P.I(f"s_mov_b32 {t1}, {f2u(sc)}")
    P.I(f"s_cselect_b32 {t0}, {f2u(sc/2)}, {t1}")
    P.I(f"v_add_f32 v60, {w16}, {c}")
    P.I(f"v_mul_f32 v60, {f2u(1/2048)}, v60")
    P.I(f"v_mul_f32 v61, 4.0, {g}")
    P.I(f"v_mul_f32 v61, v61, v60")
    for mb in range(2):
        for r in range(4):
            P.I(f"v_fmamk_f32 v64, v60, {f2u(float(16*mb+r))}, v61")
            P.I(f"v_cos_f32 v66, v64")
            P.I(f"v_sin_f32 v68, v64")
            P.I(f"v_mul_f32 v66, {t0}, v66")
            P.I(f"v_mul_f32 v68, {t0}, v68")
            P.I(f"v_accvgpr_write_b32 a{aT2C+4*mb+r}, v66")
            P.I(f"v_accvgpr_write_b32 a{aT2S+4*mb+r}, v68")

def prologue(P):
    P.I(f"""s_cmp_ge_u32 s2, 256
s_cbranch_scc1 L_end""")
    if cfg.stamps or cfg.dbgtime: P.I("s_memtime s[98:99]")
    if cfg.dbgtime: P.I("s_memrealtime s[96:97]")
    P.I(f"""s_load_dwordx16 s[64:79], s[0:1], 0
s_load_dwordx2 s[36:37], s[0:1], 72
v_lshrrev_b32 v2, 6, v0
v_and_b32 v1, 63, v0
s_getpc_b64 s[4:5]
L_pc:
v_readfirstlane_b32 {sW}, v2
v_lshlrev_b32 v2, 4, v1
s_and_b32 {sJ}, s2, 7
s_lshr_b32 {sI}, s2, 3
s_mov_b32 {sSPIN}, 400000""")
    P.I(f"""s_and_b32 {t0}, {sI}, 7
s_lshl_b32 {t0}, {t0}, 2
s_add_u32 {t0}, {t0}, {sW}
s_lshl_b32 {t0}, {t0}, 10
v_add_u32 v12, {t0}, v2
v_min_u32 v12, L_code_end-L_pc-16, v12
global_load_dwordx4 v[44:47], v12, s[4:5]
v_add_u32 v12, 32768, v12
v_min_u32 v12, L_code_end-L_pc-16, v12
global_load_dwordx4 v[40:43], v12, s[4:5]""")
    if cfg.mapping == 0:
        P.I(f"""s_and_b32 {sBROT}, {sI}, 7
s_and_b32 {t0}, {sJ}, 3
s_lshr_b32 {t1}, {sI}, 3
s_lshl_b32 {sPROT}, {t1}, 1
s_lshr_b32 {sMG}, {sJ}, 2
s_lshl_b32 {sMG}, {sMG}, 2
s_add_u32 {sMG}, {sMG}, {t1}
s_mul_i32 {sN}, {t0}, 7
s_add_u32 {sN}, {sN}, {sBROT}
s_cmp_eq_u32 {sBROT}, 7
s_cselect_b32 {sN}, {t0}, {sN}
s_cselect_b32 {sDFT}, 1, 0
s_cselect_b32 {sPROT}, 0, {sPROT}""")
    P.I("s_waitcnt lgkmcnt(0)")
    P.I(f"s_load_dword {sTAG}, s[36:37], {WS_EPOCH}")
    for srd, src, size in ((8, 64, 2097152), (24, 66, 1052672), (28, 68, 1052672), (12, 72, 1835008), (16, 74, 1835008),
                           (20, 76, 1835008), (32, 78, 2097152)):
        P.I(f"s_mov_b32 s{srd}, s{src}\ns_mov_b32 s{srd+1}, s{src+1}\ns_mov_b32 s{srd+2}, {size}\ns_mov_b32 s{srd+3}, 0x20000")
    P.I(f"s_mov_b32 s38, {WS_SIZE}\ns_mov_b32 s39, 0x20000")
    stats_loads(P)
    P.I(f"""s_lshl_b32 {t0}, {sPROT}, 3
v_add_u32 v8, {t0}, v1
v_and_b32 v8, 63, v8
v_lshlrev_b32 v8, 4, v8
v_add_u32 v9, {65536-1040}, v8
v_add_u32 v10, {2*(65536-1040)}, v8
v_add_u32 v11, {3*(65536-1040)}, v8
s_and_b32 {t0}, {sW}, 1
s_lshl_b32 {t0}, {t0}, 20
s_lshr_b32 {t1}, {sW}, 1
s_lshl_b32 {t1}, {t1}, 18
s_or_b32 {sXW}, {t0}, {t1}
s_lshl_b32 {t0}, {sMG}, 13
s_add_u32 {sXW}, {sXW}, {t0}
s_mul_i32 {sXM}, {sW}, {8*1040}""")
    P.I(f"""v_and_b32 v3, 31, v1
v_mul_u32_u24 v3, 1040, v3
v_lshrrev_b32 v4, 5, v1
v_lshl_add_u32 v3, v4, 4, v3
v_add_u32 v4, {2*XS}, v3""")

def tag_ready(P):
    P.I("s_waitcnt lgkmcnt(0)")
    P.I(f"s_mul_i32 {sTAG}, {sTAG}, 0x9E3779B1")
    P.I(f"s_add_u32 {sTAG}, {sTAG}, 0x7F4A7C15")

def ffn_phase1(P):
    P.I(f"""v_lshrrev_b32 v12, 3, v1
v_and_b32 v13, 7, v1
v_and_b32 v14, 2, v12
v_xor_b32 v13, v13, v14
v_mul_u32_u24 v12, 3584, v12
v_lshl_add_u32 v5, v13, 4, v12
v_xor_b32 v13, 4, v13
v_lshl_add_u32 v6, v13, 4, v12
s_mul_i32 s67, {sW}, {16*3584}
s_lshl_b32 {t0}, {sN}, 7
s_add_u32 s67, s67, {t0}
s_lshl_b32 s68, {sW}, 11""")
    P.ext(w_dma(0)); P.ext(x_dma(0)); P.ext(w_dma(1))
    if cfg.dbg: stamp(P)
    tag_ready(P)
    if cfg.dbg: stamp(P)
    stats_compute(P)
    if cfg.dbg: stamp(P)
    P.ext(w_dma(2))
    P.ext(wt_loads(128))
    if cfg.dbg: stamp(P)
    P.I(f"""v_and_b32 v12, 1, v1
s_lshl_b32 {t0}, {sW}, 1
v_add_u32 v12, {t0}, v12
v_bfe_u32 v13, v1, 3, 1
v_lshlrev_b32 v13, 1, v13
v_xor_b32 v12, v12, v13
v_bfe_u32 v13, v1, 4, 1
v_lshlrev_b32 v14, 2, v13
v_xor_b32 v12, v12, v14
v_lshlrev_b32 v12, 4, v12
v_lshl_add_u32 v12, v13, 13, v12
v_bfe_u32 v13, v1, 1, 1
v_lshl_add_u32 v12, v13, 3, v12
v_bfe_u32 v13, v1, 2, 2
v_lshl_add_u32 v12, v13, 7, v12
v_lshrrev_b32 v13, 5, v1
v_lshl_add_u32 v12, v13, 10, v12
v_add_u32 v7, {WRING}, v12""")
    for k in range(4): P.I(f"v_mov_b32 v{192+k}, 0x3f803f80")
    P.I(f"""s_lshl_b32 {t0}, {sMG}, 3
s_mul_i32 {sHB}, {t0}, 112
s_lshl_b32 {t0}, {sN}, 2
s_add_u32 {sHB}, {sHB}, {t0}
s_add_u32 {sHB}, {sHB}, {sW}
s_lshl_b32 {sHB}, {sHB}, 10
s_add_u32 {sHB}, {sHB}, {WS_H}""")
    fft_consts(P)
    if cfg.dbg: stamp(P)
    P.ext(wt_store(128))
    stamp(P)
    G = cfg.G
    for p in range(8):
        P.wait(f"P{p}", *( ["X0"] if p == 0 else []))
        P.I("s_barrier")
        if p == 0: stamp(P)
        if 1 <= p <= 5: P.ext(w_dma(p + 2))
        if p == 5: P.ext(x_dma(1))
        if p == 6:
            P.ext(x_dma(2))
        for t in range(4):
            for u in range(2):
                P.I(f"ds_read_b64_tr_b16 a[{16*p+4*t+2*u}:{16*p+4*t+2*u+1}], v7 offset:{(p%3)*16384 + t*2048 + u*512}")
            tx, reg, tg = xfrag_read(0, 4 * p + t); P.I(tx, tag=tg)
        if p == 7:
            P.I(f"v_and_b32 v12, 31, v1")
            P.I(f"v_lshlrev_b32 v12, 4, v12")
            ld = []
            for b in range(8):
                block_T(P, f"s{80+b}" if not cfg.stamps else f"s{80+b}", b)
                P.I(f"s_lshl_b32 s{80+b}, s{80+b}, 9")
                P.I(f"s_add_u32 s{80+b}, s{80+b}, {WS_ST}")
                ld.append(f"buffer_load_dwordx4 {v4(ST+4*b)}, v12, {SS}, s{80+b} offen sc1")
            for l in ld: P.I(l)
            P.I("s_waitcnt lgkmcnt(0)")
            P.wait("X1")
            P.I("s_barrier")
            for q in range(2 * G):
                assert (32 + q) % (3 * G) not in [(28 + t) % (3 * G) for t in range(4)]
                tx, reg, tg = xfrag_read(1, q); P.I(tx, tag=tg)
        for t in range(4):
            q = 4 * p + t
            _, reg, _ = xfrag_read(0, q)
            P.I(f"v_mfma_f32_32x32x16_bf16 {v16(ACC[0])}, {a4(4*q)}, {v4(reg)}, {'0' if q == 0 else v16(ACC[0])}")
            P.I(f"v_mfma_f32_32x32x16_bf16 {v16(CS)}, {a4(4*q)}, v[192:195], {'0' if q == 0 else v16(CS)}")
        if p < 7: P.I("s_waitcnt lgkmcnt(0)")
    stamp(P)
    wt_flag(P)
    poll(P, ld, [f"v{ST+4*b+2}" for b in range(8)], pre_issued_tag=True)
    stamp(P)
    for b in range(1, 8):
        P.ext(gemm1_block(b, False, ffn_epilogue(b - 1)))
    P.I("s_barrier")
    stamp(P)
    P.ext(ffn_epilogue(7))
    P.wait("hst")
    P.I(f"""s_lshl_b32 {t0}, {sMG}, 7
s_lshl_b32 {t1}, {sN}, 2
s_add_u32 {t0}, {t0}, {t1}
s_add_u32 {t0}, {t0}, {sW}
s_lshl_b32 {t0}, {t0}, 2
s_add_u32 {t0}, {t0}, {WS_FH}""")
    flag_store(P, t0)
    stamp(P)

def dft_phase1(P):
    P.ext(x_dma(0))
    tag_ready(P)
    stats_compute(P)
    P.ext(x_dma(1));
    P.ext(wt_loads(96))
    P.I(f"""v_and_b32 v12, 15, v1
v_lshlrev_b32 v5, 13, v12
v_bfe_u32 v13, v1, 4, 1
v_lshl_add_u32 v5, v13, 12, v5
v_lshrrev_b32 v14, 5, v1
v_lshl_add_u32 v5, v14, 5, v5
v_lshlrev_b32 v7, 4, v14
s_lshl_b32 {t0}, {sN}, 2
s_add_u32 {t0}, {t0}, {sW}
s_lshl_b32 {t1}, {t0}, 17
s_lshl_b32 {t2}, {sMG}, 9
s_add_u32 {sHB}, {t1}, {t2}
s_add_u32 {sHB}, {sHB}, {WS_X1}
s_lshl_b32 {t0}, {t0}, 4
s_add_u32 {t0}, {t0}, 1
v_add_u32 v12, {t0}, v12
v_cvt_f32_u32 v12, v12
v_mul_f32 v12, {f2u(1/512)}, v12
v_cvt_f32_u32 v13, v13
v_mul_f32 v13, {f2u(0.25)}, v13
v_cvt_f32_u32 v14, v14
v_mul_f32 v14, {f2u(8.0)}, v14
v_fmac_f32 v13, v14, v12""")
    fft_consts(P)
    P.ext(wt_store(96))
    P.ext(x_dma(2))
    stamp(P)
    for q in range(32):
        for jj in range(4):
            for e in range(2):
                P.I(f"v_fmamk_f32 v{120+e}, v12, {f2u(float(16*q+2*jj+e))}, v13")
            for e in range(2):
                P.I(f"v_cos_f32 v{122+e}, v{120+e}")
            P.I(f"v_cvt_pk_bf16_f32 v{128+4*q+jj}, v122, v123")
    stamp(P)
    wt_flag(P)
    P.I(f"""s_lshl_b32 {t0}, {sMG}, 12
s_add_u32 s80, {t0}, {WS_ST}
v_lshlrev_b32 v12, 4, v0""")
    poll(P, [f"buffer_load_dwordx4 v[96:99], v12, {SS}, s80 offen sc1"], ["v98"])
    P.I(f"""v_rsq_f32 v97, v97
v_lshrrev_b32 v13, 5, v0
v_subrev_u32 v13, {sBROT}, v13
v_and_b32 v13, 7, v13
v_and_b32 v14, 31, v0
v_lshl_add_u32 v13, v13, 5, v14
v_lshlrev_b32 v13, 2, v13
v_add_u32 v13, {RTAB}, v13
v_add_u32 v7, {RTAB}, v7
ds_write_b32 v13, v97""")
    P.I("s_waitcnt lgkmcnt(0)")
    P.wait("X0")
    P.I("s_barrier")
    stamp(P)
    for q in range(2 * cfg.G):
        tx, reg, tg = xfrag_read(0, q); P.I(tx, tag=tg)
    stamp(P)
    for b in range(8):
        P.ext(gemm1_block(b, True, dft_epilogue(b - 1) if b else None))
    P.I("s_barrier")
    stamp(P)
    P.ext(dft_epilogue(7))
    P.wait("hst")
    P.I(f"""s_lshl_b32 {t0}, {sN}, 2
s_add_u32 {t0}, {t0}, {sW}
s_lshl_b32 {t0}, {t0}, 3
s_add_u32 {t0}, {t0}, {sMG}
s_lshl_b32 {t0}, {t0}, 2
s_add_u32 {t0}, {t0}, {WS_FX}""")
    flag_store(P, t0)
    stamp(P)

def mf16(P, d, a, b, first):
    P.I(f"v_mfma_f32_16x16x32_bf16 {v4(d)}, {a}, {b}, {'0' if first else v4(d)}")

def colfft(P):
    P.I(f"""s_lshr_b32 {t0}, s2, 4
s_lshl_b32 {t0}, {t0}, 3
s_lshl_b32 {t1}, {sW}, 1
s_add_u32 {t0}, {t0}, {t1}
s_lshl_b32 {t0}, {t0}, 2
s_add_u32 s80, {t0}, {WS_FX}
s_lshr_b32 {t0}, s2, 6
s_lshl_b32 {t0}, {t0}, 10
s_add_u32 s81, {t0}, {WS_FW}
v_and_b32 v12, 1, v1
v_lshlrev_b32 v12, 2, v12
v_lshlrev_b32 v13, 2, v0""")
    poll(P, [f"buffer_load_dword v14, v12, {SS}, s80 offen sc1", f"buffer_load_dword v15, v13, {SS}, s81 offen sc1"], ["v14", "v15"])
    stamp(P)
    P.I(f"""v_and_b32 v12, 15, v1
v_lshrrev_b32 v13, 4, v1
s_lshl_b32 {t0}, {sW}, 10
v_lshl_add_u32 v3, v12, 6, {t0}
v_lshl_add_u32 v3, v13, 4, v3
v_lshlrev_b32 v4, 5, v0
s_lshl_b32 {t0}, s2, 13
s_add_u32 {t1}, {t0}, {WS_X1}
s_add_u32 {t2}, {t0}, {WS_X1+4096}
s_add_u32 {t3}, {t0}, {WS_WT}""")
    P.I(f"buffer_load_dwordx4 v[16:19], v3, {SS}, {t1} offen sc1")
    P.I(f"buffer_load_dwordx4 v[20:23], v3, {SS}, {t2} offen sc1")
    P.I(f"buffer_load_dwordx4 v[24:27], v4, {SS}, {t3} offen sc1")
    P.I(f"buffer_load_dwordx4 v[28:31], v4, {SS}, {t3} offen offset:16 sc1")
    P.I(f"""v_mul_u32_u24 v5, {ERS}, v12
v_lshl_add_u32 v6, v13, 4, v5
v_lshl_add_u32 v5, v13, 3, v5
s_lshl_b32 {t0}, {sW}, 5
v_add_u32 v5, {t0}, v5""")
    for k in range(32): P.I(f"v_accvgpr_read_b32 v{48+k}, a{aT1C+k}")
    T1C, T1S, T2C, T2S = 48, 56, 64, 72
    D = lambda part, mb: 32 + 8 * part + 4 * mb
    Xr, Xi = v4(16), v4(20)
    for mb in range(2):
        mf16(P, D(0, mb), Xr, a4(aC32 + 4*mb), True)
        mf16(P, D(1, mb), Xi, a4(aC32 + 4*mb), True)
    for mb in range(2):
        mf16(P, D(0, mb), Xi, a4(aS32 + 4*mb), False)
        mf16(P, D(1, mb), Xr, a4(aN32 + 4*mb), False)
    def cmul(cr, ci, conj):
        for mb in range(2):
            for r in range(4):
                P.I(f"v_mul_f32 v{88+4*mb+r}, v{D(0,mb)+r}, v{cr+4*mb+r}")
                P.I(f"v_mul_f32 v{96+4*mb+r}, v{D(1,mb)+r}, v{cr+4*mb+r}")
        s1, s2 = ("", "-") if conj else ("-", "")
        for mb in range(2):
            for r in range(4):
                P.I(f"v_fma_f32 v{88+4*mb+r}, {s1}v{D(1,mb)+r}, v{ci+4*mb+r}, v{88+4*mb+r}")
                P.I(f"v_fma_f32 v{96+4*mb+r}, {s2}v{D(0,mb)+r}, v{ci+4*mb+r}, v{96+4*mb+r}")
        for k in range(8): P.I(f"v_cvt_pk_bf16_f32 v{80+k}, v{88+2*k}, v{89+2*k}")
    def exchange(E):
        for part in range(2):
            for mb in range(2):
                k = 80 + 4 * part + 2 * mb
                P.I(f"ds_write_b64 v5, v[{k}:{k+1}] offset:{E + (part*32 + 16*mb)*ERS}")
        P.I("s_waitcnt lgkmcnt(0)")
        P.I("s_barrier")
        for ks in range(2):
            for mb in range(2):
                for part in range(2):
                    P.I(f"ds_read_b128 {v4(Y(part,mb,ks))}, v6 offset:{E + (part*32 + 16*mb)*ERS + ks*64}")
    Y = lambda part, mb, ks: 88 + 16 * ks + 8 * mb + 4 * part
    cmul(T1C, T1S, True)
    exchange(E1)
    for k in range(4):
        P.I(f"v_lshlrev_b32 v{120+2*k}, 16, v{24+k}")
        P.I(f"v_and_b32 v{121+2*k}, 0xffff0000, v{24+k}")
        P.I(f"v_lshlrev_b32 v{16+2*k}, 16, v{28+k}")
        P.I(f"v_and_b32 v{17+2*k}, 0xffff0000, v{28+k}")
    for ks in range(2):
        for mb in range(2):
            mf16(P, D(0, mb), a4(aC64 + 4*ks), v4(Y(0, mb, ks)), ks == 0)
            mf16(P, D(1, mb), a4(aC64 + 4*ks), v4(Y(1, mb, ks)), ks == 0)
        for mb in range(2):
            mf16(P, D(0, mb), a4(aS64 + 4*ks), v4(Y(1, mb, ks)), False)
            mf16(P, D(1, mb), a4(aN64 + 4*ks), v4(Y(0, mb, ks)), False)
    cmul(120, 16, False)
    exchange(E2)
    for ks in range(2):
        for mb in range(2):
            mf16(P, D(0, mb), v4(Y(0, mb, ks)), a4(aC64 + 4*ks), ks == 0)
            mf16(P, D(1, mb), v4(Y(1, mb, ks)), a4(aC64 + 4*ks), ks == 0)
        for mb in range(2):
            mf16(P, D(0, mb), v4(Y(1, mb, ks)), a4(aN64 + 4*ks), False)
            mf16(P, D(1, mb), v4(Y(0, mb, ks)), a4(aS64 + 4*ks), False)
    cmul(T2C, T2S, False)
    Ur, Ui = v4(80), v4(84)
    for sb in range(2):
        mf16(P, D(0, sb), a4(aC32 + 4*sb), Ur, True)
        mf16(P, D(1, sb), a4(aC32 + 4*sb), Ui, True)
    for sb in range(2):
        mf16(P, D(0, sb), a4(aN32 + 4*sb), Ui, False)
        mf16(P, D(1, sb), a4(aS32 + 4*sb), Ur, False)
    P.I(f"""s_lshl_b32 {t0}, s2, 13
s_add_u32 {t1}, {t0}, {WS_Z}
s_add_u32 {t2}, {t0}, {WS_Z+4096}""")
    for k in range(8): P.I(f"v_cvt_pk_bf16_f32 v{88+k}, v{32+2*k}, v{33+2*k}")
    P.I(f"buffer_store_dwordx4 v[88:91], v3, {SS}, {t1} offen sc1", tag="zst")
    P.I(f"buffer_store_dwordx4 v[92:95], v3, {SS}, {t2} offen sc1", tag="zst")
    P.wait("zst")
    P.I(f"""s_lshl_b32 {t0}, {sW}, 10
s_lshl_b32 {t1}, s2, 2
s_add_u32 {t0}, {t0}, {t1}
s_add_u32 {t0}, {t0}, {WS_FZ}""")
    flag_store(P, t0)
    stamp(P)

def kp_next(P, s):
    P.I(f"s_add_u32 {s}, {s}, 1")
    P.I(f"s_cmp_eq_u32 {s}, 14")
    P.I(f"s_cselect_b32 {s}, 0, {s}")

def gemm2(P):
    P.I(f"""s_lshl_b32 {sT0}, {sJ}, 2
s_lshr_b32 {t0}, {sI}, 3
s_add_u32 {sT0}, {sT0}, {t0}
s_lshl_b32 {sT0}, {sT0}, 1
s_and_b32 {sCT}, {sI}, 7
s_mul_i32 {sKP}, {sCT}, 7
s_lshr_b32 {sKP}, {sKP}, 2
s_lshl_b32 s82, {sW}, 15
s_add_u32 s82, s82, {STG}""")
    P.I(f"""v_lshrrev_b32 v12, 3, v1
v_and_b32 v13, 7, v1
v_and_b32 v14, 2, v12
v_lshlrev_b32 v14, 1, v14
v_xor_b32 v13, v13, v14
v_lshlrev_b32 v13, 4, v13
v_lshl_add_u32 v9, v12, 12, v13
v_lshl_add_u32 v5, v12, 10, v13
s_lshl_b32 {t0}, {sCT}, 7
v_add_u32 v5, {t0}, v5
v_add_u32 v6, {8192-1024}, v5
v_add_u32 v7, {2*(8192-1024)}, v5
v_add_u32 v8, {3*(8192-1024)}, v5""")
    P.I(f"""v_and_b32 v12, 1, v1
v_lshlrev_b32 v12, 2, v12
v_bfe_u32 v13, v1, 4, 1
v_lshl_or_b32 v12, v13, 1, v12
v_bfe_u32 v13, v1, 1, 1
v_or_b32 v12, v12, v13
v_lshlrev_b32 v12, 3, v12
v_bfe_u32 v13, v1, 3, 1
v_lshl_or_b32 v12, v13, 6, v12
v_bfe_u32 v13, v1, 2, 2
v_lshl_or_b32 v12, v13, 7, v12
v_lshrrev_b32 v13, 5, v1
v_lshl_or_b32 v12, v13, 10, v12
s_and_b32 {t0}, {sW}, 1
s_lshl_b32 {t0}, {t0}, 6
v_xor_b32 v10, {t0}, v12
v_xor_b32 v11, 64, v10
v_add_u32 v10, s82, v10
v_add_u32 v11, s82, v11
s_lshr_b32 {t0}, {sW}, 1
s_lshl_b32 {t0}, {t0}, 6
v_xor_b32 v3, {t0}, v12
v_add_u32 v3, {STG}, v3
v_add_u32 v4, 65536, v3""")
    P.I(f"s_mul_i32 s83, {sW}, {448*1024}")
    def wd_dma(pairs, s_kp):
        Q = Prog()
        for n, pr in enumerate(pairs):
            Q.I(f"s_lshl_b32 s84, {s_kp}, 15")
            Q.I(f"s_add_u32 s84, s84, s83")
            Q.I(f"s_add_u32 m0, s82, {n*4096}")
            kp_next(Q, s_kp)
            for r in range(4):
                Q.I(f"buffer_load_dwordx4 v{5+r}, {SD}, s84 offen offset:{r*1024} lds", tag=f"WD{pr}")
        return Q
    def wd_read(pairs):
        Q = Prog()
        for n, pr in enumerate(pairs):
            Q.wait(f"WD{pr}")
            for e in range(2):
                q = 2 * pr + e
                for cb in range(2):
                    for u in range(2):
                        Q.I(f"ds_read_b64_tr_b16 a[{8*q+4*cb+2*u}:{8*q+4*cb+2*u+1}], v{10+cb} offset:{n*4096 + e*2048 + u*512}")
        return Q
    P.I(f"s_mov_b32 s85, {sKP}")
    P.ext(wd_dma(range(8), "s85"))
    P.ext(wd_read(range(8)))
    P.I("s_waitcnt lgkmcnt(0)")
    P.ext(wd_dma(range(8, 14), "s85"))
    P.ext(wd_read(range(8, 14)))
    stamp(P)
    P.I(f"""s_lshr_b32 {t0}, {sT0}, 3
s_lshl_b32 {t0}, {t0}, 7
s_mul_i32 {t1}, {sW}, 28
s_add_u32 {t0}, {t0}, {t1}
s_lshl_b32 {t0}, {t0}, 2
s_add_u32 s80, {t0}, {WS_FH}
v_min_u32 v12, 27, v1
v_lshlrev_b32 v12, 2, v12""")
    poll(P, [f"buffer_load_dword v14, v12, {SS}, s80 offen sc1"], ["v14"])
    stamp(P)
    P.I(f"""s_lshr_b32 {t0}, {sW}, 1
s_add_u32 {t1}, {sT0}, {t0}
s_xor_b32 {t0}, {t0}, 1
s_add_u32 {t2}, {sT0}, {t0}
s_mul_i32 {t3}, {sW}, 28
s_mul_i32 s86, {t1}, 112
s_add_u32 s86, s86, {t3}
s_lshl_b32 s86, s86, 10
s_add_u32 s86, s86, {WS_H}
s_mul_i32 s87, {t2}, 112
s_add_u32 s87, s87, {t3}
s_lshl_b32 s87, s87, 10
s_add_u32 s87, s87, {WS_H}
s_mov_b32 s85, {sKP}""")
    HR = 224
    def h_loads(pr):
        Q = Prog()
        Q.I(f"s_lshl_b32 s84, s85, 11")
        Q.I(f"s_add_u32 s88, s84, s86")
        Q.I(f"s_add_u32 s89, s84, s87")
        kp_next(Q, "s85")
        for e in range(2):
            for tb in range(2):
                Q.I(f"buffer_load_dwordx4 {a4(HR + 16*(pr&1) + 8*e + 4*tb)}, v2, {SS}, s{88+tb} offen offset:{e*1024} sc1")
        return Q
    P.I(f"""v_and_b32 v12, 3, v1
v_bfe_u32 v13, v1, 4, 1
v_lshl_or_b32 v12, v13, 2, v12
v_bfe_u32 v13, v1, 2, 2
v_lshl_or_b32 v12, v13, 3, v12
v_lshlrev_b32 v15, 16, v12
v_lshrrev_b32 v13, 5, v1
v_lshl_or_b32 v15, v13, 5, v15
s_lshl_b32 {t1}, {t1}, 10
s_lshl_b32 {t0}, {sCT}, 7
s_add_u32 {t1}, {t1}, {t0}
s_and_b32 {t0}, {sW}, 1
s_lshl_b32 {t0}, {t0}, 6
s_add_u32 s90, {t1}, {t0}""")
    P.ext(h_loads(0)); P.ext(h_loads(1))
    Gp = Prog()
    Gp.I(f"""v_and_b32 v96, 3, v1
v_bfe_u32 v97, v1, 3, 1
v_lshl_or_b32 v96, v97, 2, v96
v_bfe_u32 v97, v1, 4, 1
v_lshl_or_b32 v96, v97, 3, v96
v_bfe_u32 v97, v1, 2, 1
v_lshl_or_b32 v96, v97, 4, v96
s_lshl_b32 s91, {sCT}, 6
s_and_b32 s92, {sW}, 1
s_lshl_b32 s92, s92, 5
s_add_u32 s91, s91, s92
v_add_u32 v96, s91, v96
v_cvt_f32_u32 v96, v96
v_mul_f32 v96, {f2u(1/512)}, v96
v_lshrrev_b32 v97, 5, v1
v_lshl_or_b32 v97, v97, 2, 1
v_cvt_f32_u32 v97, v97
v_mul_f32 v97, v97, v96""")
    for q in range(32):
        for jj in range(4):
            tb = 98 + 3 * (jj & 1)
            Gp.I(f"v_fmamk_f32 v{tb}, v96, {f2u(float(8*q+jj))}, v97")
            Gp.I(f"v_cos_f32 v{tb+1}, v{tb}")
            Gp.I(f"v_sin_f32 v{tb+2}, -v{tb}")
            Gp.I(f"v_cvt_pk_bf16_f32 v{128+4*q+jj}, v{tb+1}, v{tb+2}")
    M = Prog()
    zd = Prog()
    for pr in range(14):
        for e in range(2):
            q = 2 * pr + e
            for tb in range(2):
                for cb in range(2):
                    acc = 16 + 16 * (cb + 2 * tb)
                    M.I(f"v_mfma_f32_32x32x16_bf16 {v16(acc)}, {a4(8*q+4*cb)}, {a4(HR + 16*(pr&1) + 8*e + 4*tb)}, {'0' if q == 0 else v16(acc)}")
        if pr + 2 < 14: M.ext(h_loads(pr + 2))
        if pr == 11:
            M.I(f"buffer_load_dwordx4 v[112:115], v15, {SX}, s90 offen")
            M.I(f"buffer_load_dwordx4 v[116:119], v15, {SX}, s90 offen offset:16")
            M.I(f"""s_lshr_b32 {t0}, {sT0}, 4
s_lshl_b32 {t0}, {t0}, 10
s_lshl_b32 {t1}, {sW}, 8
s_add_u32 {t0}, {t0}, {t1}
s_add_u32 s80, {t0}, {WS_FZ}
v_lshlrev_b32 v12, 2, v1""")
            poll(M, [f"buffer_load_dword v14, v12, {SS}, s80 offen sc1"], ["v14"])
            M.I(f"""s_lshl_b32 {t0}, {sW}, 19
s_lshl_b32 {t1}, {sT0}, 6
s_add_u32 {t0}, {t0}, {t1}
s_add_u32 {t0}, {t0}, {WS_Z}""")
            M.I("s_waitcnt lgkmcnt(0)")
            for n in range(16):
                M.I(f"s_add_u32 m0, s82, {n*1024}")
                M.I(f"s_add_u32 {t1}, {t0}, {n*8*4096}")
                M.I(f"buffer_load_dwordx4 v9, {SS}, {t1} offen sc1 lds", tag="ZD")
    M = spread(M, Gp, key=lambda i: i.kind == "mfma", first=0, last=96)
    P.ext(M)
    stamp(P)
    P.I(f"v_add_u32 v12, s82, v2")
    for beta in range(1, 4):
        for k in range(4):
            P.I(f"ds_write_b128 v12, {v4(16+16*beta+4*k)} offset:{16384 + (beta-1)*4096 + k*1024}")
    for beta in range(1, 4):
        P.I(f"s_xor_b32 {t0}, {sW}, {beta}")
        P.I(f"s_lshl_b32 {t0}, {t0}, 15")
        P.I(f"s_add_u32 {t0}, {t0}, {STG + 16384 + (beta-1)*4096}")
        P.I(f"v_add_u32 v{4+beta}, {t0}, v2")
    P.I("s_waitcnt lgkmcnt(0)")
    P.wait("ZD")
    P.I("s_barrier")
    P.I(f"s_or_b32 {t0}, s2, {sW}")
    P.I(f"s_cmp_lg_u32 {t0}, 0")
    P.I("s_cbranch_scc1 L_noep")
    P.I(f"s_mov_b32 {t0}, {WS_EPOCH}")
    flag_store(P, t0, "v12", "v13")
    P.I("L_noep:")
    stamp(P)
    ZR = 96
    def zread(q):
        Q = Prog()
        for u in range(2):
            r = ZR + 4 * (q & 3) + 2 * u
            Q.I(f"ds_read_b64_tr_b16 v[{r}:{r+1}], v{3 + (q >> 4)} offset:{((q >> 3) & 1)*32768 + (q & 7)*2048 + u*512}")
        return Q
    M = Prog()
    for q in range(3): M.ext(zread(q))
    for q in range(32):
        M.I(f"v_mfma_f32_32x32x16_bf16 {v16(80)}, {v4(128+4*q)}, {v4(ZR+4*(q&3))}, {'0' if q == 0 else v16(80)}")
        if q + 3 < 32: M.ext(zread(q + 3))
    X = Prog()
    for beta in range(1, 4):
        for k in range(4):
            X.I(f"ds_read_b128 {v4(16+16*beta+4*k)}, v{4+beta} offset:{k*1024}")
    for beta in range(1, 4):
        for r in range(16):
            X.I(f"v_add_f32 v{16+r}, v{16+r}, v{16+16*beta+r}")
    for r in range(16): X.I(f"v_mul_f32 v{32+r}, {f2u(-LOG2E)}, v{16+r}")
    for r in range(16): X.I(f"v_exp_f32 v{32+r}, v{32+r}")
    for r in range(16): X.I(f"v_add_f32 v{32+r}, 1.0, v{32+r}")
    for r in range(16): X.I(f"v_rcp_f32 v{32+r}, v{32+r}")
    for r in range(16): X.I(f"v_mul_f32 v{16+r}, v{16+r}, v{32+r}")
    for k in range(8):
        X.I(f"v_lshlrev_b32 v{32+2*k}, 16, v{112+k}")
        X.I(f"v_and_b32 v{33+2*k}, 0xffff0000, v{112+k}")
    M = spread(M, X, key=lambda i: i.kind == "mfma", first=0, last=32)
    P.ext(M)
    for r in range(16): P.I(f"v_fmac_f32 v{32+r}, v{16+r}, v{80+r}")
    for k in range(8): P.I(f"v_cvt_pk_bf16_f32 v{48+k}, v{32+2*k}, v{33+2*k}")
    P.I(f"buffer_store_dwordx4 v[48:51], v15, {SO}, s90 offen")
    P.I(f"buffer_store_dwordx4 v[52:55], v15, {SO}, s90 offen offset:16")
    stamp(P)

def dump_stamps(P):
    if not cfg.stamps: return
    P.I("s_waitcnt vmcnt(0) lgkmcnt(0)")
    for i in range(16):
        if i < 14:
            P.I(f"v_mov_b32 v{16+i}, {STR[i]}")
        else:
            P.I(f"v_mov_b32 v{16+i}, {sDFT}")
    P.I(f"s_lshl_b32 {t0}, s2, 8\ns_lshl_b32 {t1}, {sW}, 6\ns_add_u32 {t0}, {t0}, {t1}\ns_add_u32 {t0}, {t0}, {WS_DBG}")
    P.I("v_mov_b32 v12, 0\ns_mov_b64 exec, 1")
    for k in range(4):
        P.I(f"buffer_store_dwordx4 {v4(16+4*k)}, v12, {SS}, {t0} offen offset:{16*k}")

def dump_time(P):
    if not cfg.dbgtime: return
    P.I("s_waitcnt vmcnt(0) lgkmcnt(0)")
    P.I("s_load_dwordx2 s[4:5], s[0:1], 64")
    P.I("s_memrealtime s[94:95]")
    P.I("s_memtime s[92:93]")
    P.I("s_waitcnt lgkmcnt(0)")
    P.I("s_mov_b32 s6, 256\ns_mov_b32 s7, 0x20000")
    P.I("s_sub_u32 s92, s92, s98")
    P.I("s_not_b32 s96, s96")
    P.I("v_mov_b32 v16, s94\nv_mov_b32 v17, s96\nv_mov_b32 v18, s92\nv_mov_b32 v12, 0\ns_mov_b64 exec, 1")
    P.I("buffer_atomic_umax v16, v12, s[4:7], 0 offen")
    P.I("buffer_atomic_umax v17, v12, s[4:7], 0 offen offset:4")
    P.I("buffer_atomic_umax v18, v12, s[4:7], 0 offen offset:8")

def build():
    P = Prog()
    prologue(P)
    P.I(f"s_cmp_eq_u32 {sDFT}, 1")
    P.I("s_cbranch_scc1 L_dft")
    base = nstamp[0]
    F = Prog(); ffn_phase1(F)
    F.I("s_waitcnt vmcnt(0) lgkmcnt(0)")
    D = Prog(); nstamp[0] = base
    D.I("L_dft:")
    dft_phase1(D)
    D.I("s_waitcnt vmcnt(0) lgkmcnt(0)")
    D.I("s_branch L_join")
    R = Prog()
    R.I("L_join:")
    R.assume()
    if cfg.stop_after != "p1":
        colfft(R)
        if cfg.stop_after != "fft":
            gemm2(R)
    dump_stamps(R)
    dump_time(R)
    R.I("L_end:")
    R.I("s_endpgm")
    pro = resolve_waits(P.L + F.L + R.L)
    dall = resolve_waits(P.L + D.L)
    k = next(i for i, x in enumerate(dall) if x.text == "L_dft:")
    dpart = dall[k:]
    sl = resolve_waits(slow.L)
    L = pro + [Ins("s_nop 7")] + dpart + sl
    L, nops = pad_hazards(L)
    body = render(L)
    hdr = open("cdna_kernels/" + NAME + ".s.ref").read().split("; Override launch")[0]
    s = hdr + f"""; @launch grid=(256,1,1) block=(256,1,1) lds=163840
.amdgcn_target "amdgcn-amd-amdhsa--gfx950"
.text
.globl {NAME}_kernel
.p2align 8
.type {NAME}_kernel,@function
{NAME}_kernel:
{body}    s_endpgm
L_code_end:
.section .rodata,"a"
.p2align 6
.amdhsa_kernel {NAME}_kernel
  .amdhsa_next_free_vgpr 512
  .amdhsa_next_free_sgpr 102
  .amdhsa_accum_offset 256
  .amdhsa_group_segment_fixed_size 0
  .amdhsa_kernarg_size 80
  .amdhsa_user_sgpr_count 2
  .amdhsa_user_sgpr_kernarg_segment_ptr 1
  .amdhsa_system_sgpr_workgroup_id_x 1
.end_amdhsa_kernel
"""
    return s, len(L), nops

if __name__ == "__main__":
    out = sys.argv[1]
    for a in sys.argv[2:]:
        k, v = a.split("=")
        setattr(cfg, k, eval(v))
    s, n, nops = build()
    open(out, "w").write(s)
    print("instructions", n, "nops", nops)
```

```python
import sys, struct, math
sys.path.insert(0, "gen")
from asmgen import *

NAME = "recurrent_scan__spectral_gfnet__glu_gated_geglu__prompt"
def f2u(x): return "0x%08x" % struct.unpack("<I", struct.pack("<f", x))[0]

WS_EPOCH = 0
WS_FH = 0x1000; WS_FX = 0x2000; WS_FW = 0x3000; WS_FZ = 0x4000
WS_ST = 0x10000
WS_X1 = 0x100000; WS_WT = 0x300000; WS_Z = 0x500000; WS_H = 0x700000
WS_DBG = 0xF00000; WS_SIZE = 0x1000000
XS = 33280
WRING = 3 * XS
RTAB = 4 * XS
ERS = 144
E1 = 0; E2 = 2 * 32 * ERS
STG = 2 * E2
sW = "s3"
SX, SG, SU, SD, SR, SI, SO, SS = ("s[8:11]", "s[12:15]", "s[16:19]", "s[20:23]", "s[24:27]", "s[28:31]", "s[32:35]", "s[36:39]")
sTAG, sJ, sI, sN, sMG, sBROT, sPROT, sDFT = "s40", "s41", "s42", "s43", "s44", "s45", "s46", "s47"
sXW, sXM = "s48", "s49"
sHB = "s50"
sT0, sCT, sKP = "s51", "s52", "s53"
sSPIN = "s54"
t0, t1, t2, t3, t4, t5 = "s56", "s57", "s58", "s59", "s60", "s61"
LOG2E = 1.4426950408889634
K1 = 2 * 0.7978845608028654

class Cfg:
    stamps = False
    mapping = 0
    stop_after = None
    dbg = False
    padto = 0
    dbgtime = False
    G = 4
cfg = Cfg()

nstamp = [0]
STR = ['s69','s70','s71','s72','s73','s74','s75','s76','s77','s78','s79','s6','s7','s55']
def stamp(P):
    if cfg.stamps:
        i = nstamp[0]; nstamp[0] += 1
        assert i < 14
        P.I("s_memtime s[94:95]")
        P.I("s_waitcnt lgkmcnt(0)")
        P.I(f"s_sub_u32 {STR[i]}, s94, s98")

def v4(b): return f"v[{b}:{b+3}]"
def a4(b): return f"a[{b}:{b+3}]"
def v16(b): return f"v[{b}:{b+15}]"

lblc = [0]
slow = Prog()
def poll(P, load_text, dst_regs, lanes_mask=None, pre_issued_tag=None):
    n = lblc[0]; lblc[0] += 1
    def cmp(Q):
        Q.I(f"v_cmp_ne_u32 vcc, {sTAG}, {dst_regs[0]}")
        for r in dst_regs[1:]:
            Q.I(f"v_cmp_ne_u32 s[62:63], {sTAG}, {r}")
            Q.I(f"s_or_b64 vcc, vcc, s[62:63]")
        if lanes_mask is not None:
            Q.I(f"s_and_b32 vcc_lo, vcc_lo, {lanes_mask & 0xffffffff:#x}")
            Q.I(f"s_and_b32 vcc_hi, vcc_hi, {lanes_mask >> 32:#x}")
        Q.I("s_cmp_lg_u64 vcc, 0")
    if not pre_issued_tag:
        for l in load_text: P.I(l)
    cmp(P)
    P.I(f"s_cbranch_scc1 L_slow{n}")
    P.I(f"L_back{n}:")
    S = Prog()
    S.assume()
    S.I(f"L_slow{n}:")
    S.I(f"s_cmp_eq_u32 {sSPIN}, 0")
    S.I(f"s_cbranch_scc1 L_back{n}")
    S.I(f"s_sub_u32 {sSPIN}, {sSPIN}, 1")
    S.I("s_sleep 2")
    for l in load_text: S.I(l)
    S.I("s_waitcnt vmcnt(0)")
    cmp(S)
    S.I(f"s_cbranch_scc1 L_slow{n}")
    S.I("s_nop 4")
    S.I(f"s_branch L_back{n}")
    slow.ext(S)

def flag_store(P, voff_expr_sgpr, tmpv="v14", tmpa="v15"):
    P.I(f"v_mov_b32 {tmpv}, {sTAG}")
    P.I(f"v_mov_b32 {tmpa}, 0")
    P.I("s_mov_b64 exec, 1")
    P.I(f"buffer_store_dword {tmpv}, {tmpa}, {SS}, {voff_expr_sgpr} offen sc1", tag="flag")
    P.I("s_mov_b64 exec, -1")

def block_T(P, dst, b):
    P.I(f"s_add_u32 {dst}, {sBROT}, {b}")
    P.I(f"s_and_b32 {dst}, {dst}, 7")
    P.I(f"s_lshl_b32 {t5}, {sMG}, 3")
    P.I(f"s_or_b32 {dst}, {dst}, {t5}")

def x_dma(b):
    P = Prog(); slot = (b % 4) * XS
    P.I(f"s_add_u32 s64, {sBROT}, {b}")
    P.I(f"s_and_b32 s64, s64, 7")
    P.I(f"s_lshl_b32 s64, s64, 10")
    P.I(f"s_add_u32 s64, s64, {sXW}")
    for a in range(2):
        P.I(f"s_add_u32 m0, {sXM}, {slot + a*4*1040}")
        if a: P.I(f"s_add_u32 s64, s64, {8*65536}")
        for r in range(4):
            P.I(f"buffer_load_dwordx4 v{8+r}, {SX}, s64 offen offset:{r*1040} lds", tag=f"X{b}")
    return P

def w_dma(p):
    P = Prog(); slot = WRING + (p % 3) * 16384
    P.I(f"s_add_u32 {t0}, {sPROT}, {p}")
    P.I(f"s_and_b32 {t0}, {t0}, 7")
    P.I(f"s_mul_i32 {t0}, {t0}, {64*3584}")
    P.I(f"s_add_u32 {t0}, {t0}, s67")
    P.I(f"s_add_u32 {t1}, {t0}, {8*3584}")
    for mtx, srd, vo in ((0, SG, "v5"), (1, SU, "v6")):
        for e in range(2):
            P.I(f"s_add_u32 m0, s68, {slot + mtx*8192 + e*1024}")
            P.I(f"buffer_load_dwordx4 {vo}, {srd}, {t1 if e else t0} offen lds", tag=f"P{p}")
    return P

ACC = [16, 32]
RING = 48
def xfrag_read(b, q):
    G = cfg.G; NR = 3 * G
    gq = b * 32 + q
    reg = RING + 4 * (gq % NR)
    slot = b % 4
    base = "v3" if slot < 2 else "v4"
    return f"ds_read_b128 {v4(reg)}, {base} offset:{(slot & 1) * XS + q * 32}", reg, f"xf{gq // G}"

def gemm1_block(b, dft, epi, first_reads_done=True):
    G = cfg.G
    M = Prog()
    acc = ACC[b & 1]
    for q in range(32):
        if q % G == 0:
            M.wait(f"xf{(b*32+q)//G}", lds=True)
        _, reg, _ = xfrag_read(b, q)
        c = "0" if q == 0 else v16(acc)
        if dft:
            M.I(f"v_mfma_f32_32x32x16_bf16 {v16(acc)}, {v4(reg)}, {v4(128+4*q)}, {c}")
        else:
            M.I(f"v_mfma_f32_32x32x16_bf16 {v16(acc)}, {a4(4*q)}, {v4(reg)}, {c}")
        nq = q + 2 * G
        if q == 23 - G and b < 7:
            M.wait(f"X{b+1}")
            M.I("s_barrier")
        if nq < 32:
            t, _, tg = xfrag_read(b, nq); M.I(t, tag=tg)
        elif b < 7:
            t, _, tg = xfrag_read(b + 1, nq - 32); M.I(t, tag=tg)
    ismf = lambda i: i.kind == "mfma"
    if b + 2 <= 7 and b >= 1:
        M = spread(M, x_dma(b + 2), key=ismf, first=1, last=31)
    if epi is not None:
        M = spread(M, epi, key=ismf, first=2, last=32)
    return M

CS = 160
ST = 96
def ffn_epilogue(b):
    P = Prog(); acc = ACC[b & 1]
    m, V = f"v{ST+4*b}", f"v{ST+4*b+1}"
    vr, vA, vB, vN = "v152", "v153", "v154", "v155"
    T = [f"v{128+i}" for i in range(8)]
    out = 144 + 4 * (b & 1)
    P.I(f"v_rsq_f32 {vr}, {V}")
    P.I(f"v_mul_f32 {vN}, -1.0, {m}")
    P.I(f"v_mul_f32 {vA}, {f2u(-K1*LOG2E)}, {vr}")
    P.I(f"v_mul_f32 {vB}, {vr}, {vr}")
    for r in range(16): P.I(f"v_fmac_f32 v{acc+r}, {vN}, v{CS+r}")
    P.I(f"v_mul_f32 {vB}, {f2u(0.044715)}, {vB}")
    P.I(f"v_mul_f32 {vB}, {vB}, {vA}")
    for r in range(8): P.I(f"v_mul_f32 {T[r]}, v{acc+r}, v{acc+r}")
    for r in range(8): P.I(f"v_fma_f32 {T[r]}, {vB}, {T[r]}, {vA}")
    for r in range(8): P.I(f"v_mul_f32 {T[r]}, v{acc+r}, {T[r]}")
    for r in range(8):
        P.I(f"v_exp_f32 {T[r]}, {T[r]}")
        P.I(f"v_mul_f32 v{acc+8+r}, v{acc+r}, v{acc+8+r}")
    for r in range(8): P.I(f"v_fma_f32 {T[r]}, {T[r]}, {V}, {V}")
    for r in range(8): P.I(f"v_rcp_f32 {T[r]}, {T[r]}")
    for r in range(8): P.I(f"v_mul_f32 {T[r]}, v{acc+8+r}, {T[r]}")
    for r in range(4): P.I(f"v_cvt_pk_bf16_f32 v{out+r}, {T[2*r]}, {T[2*r+1]}")
    P.I(f"s_add_u32 s65, {sBROT}, {b}")
    P.I(f"s_and_b32 s65, s65, 7")
    P.I(f"s_mul_i32 s65, s65, {112*1024}")
    P.I(f"s_add_u32 s65, s65, {sHB}")
    P.I(f"buffer_store_dwordx4 {v4(out)}, v2, {SS}, s65 offen sc1", tag="hst")
    return P

def dft_epilogue(b):
    P = Prog(); acc = ACC[b & 1]
    rr = 96; out = 112
    for k in range(4):
        P.I(f"ds_read_b128 {v4(rr+4*k)}, v7 offset:{b*128 + k*32}")
    for r in range(16): P.I(f"v_mul_f32 v{acc+r}, v{acc+r}, v{rr+r}")
    for r in range(8): P.I(f"v_cvt_pk_bf16_f32 v{out+r}, v{acc+2*r}, v{acc+2*r+1}")
    P.I(f"s_add_u32 s65, {sBROT}, {b}")
    P.I(f"s_and_b32 s65, s65, 7")
    P.I(f"s_lshl_b32 s65, s65, 6")
    P.I(f"s_add_u32 s65, s65, {sHB}")
    P.I(f"buffer_store_dwordx4 {v4(out)}, v5, {SS}, s65 offen sc1", tag="hst")
    P.I(f"buffer_store_dwordx4 {v4(out+4)}, v5, {SS}, s65 offen offset:16 sc1", tag="hst")
    return P

def reduce64(P, regs, sdst):
    for ctl in ("row_shr:1", "row_shr:2", "row_shr:4", "row_shr:8"):
        for r in regs: P.I(f"v_add_f32_dpp {r}, {r}, {r} {ctl} row_mask:0xf bank_mask:0xf bound_ctrl:0")
    for r in regs: P.I(f"v_add_f32_dpp {r}, {r}, {r} row_bcast:15 row_mask:0xa bank_mask:0xf")
    for r in regs: P.I(f"v_add_f32_dpp {r}, {r}, {r} row_bcast:31 row_mask:0xc bank_mask:0xf")
    for r, s in zip(regs, sdst): P.I(f"v_readlane_b32 {s}, {r}, 63")

def stats_loads(P):
    P.I(f"""s_and_b32 {t0}, s2, 1
s_lshl_b32 {t0}, {t0}, 4
s_lshr_b32 {t1}, {sW}, 1
s_lshl_b32 {t1}, {t1}, 3
s_or_b32 {t0}, {t0}, {t1}
s_and_b32 {t1}, s2, 2
s_lshl_b32 {t1}, {t1}, 1
s_or_b32 {t0}, {t0}, {t1}
s_and_b32 {t1}, {sW}, 1
s_lshl_b32 {t1}, {t1}, 1
s_or_b32 {t0}, {t0}, {t1}
s_lshl_b32 {t0}, {t0}, 16
s_lshr_b32 {t1}, s2, 2
s_lshl_b32 {t1}, {t1}, 10
s_add_u32 {t0}, {t0}, {t1}
s_add_u32 {t1}, {t0}, 65536""")
    P.I(f"buffer_load_dwordx4 v[48:51], v2, {SX}, {t0} offen")
    P.I(f"buffer_load_dwordx4 v[52:55], v2, {SX}, {t1} offen")

def stats_compute(P):
    for e in range(2):
        for k in range(4):
            P.I(f"v_lshlrev_b32 v{56+8*e+2*k}, 16, v{48+4*e+k}")
            P.I(f"v_and_b32 v{57+8*e+2*k}, 0xffff0000, v{48+4*e+k}")
    for e in range(2): P.I(f"v_add_f32 v{72+e}, v{56+8*e}, v{57+8*e}")
    for k in range(2, 8):
        for e in range(2): P.I(f"v_add_f32 v{72+e}, v{72+e}, v{56+8*e+k}")
    reduce64(P, ["v72", "v73"], [t0, t1])
    for e, s in ((0, t0), (1, t1)):
        P.I(f"v_mov_b32 v{74+e}, {s}")
        P.I(f"v_mul_f32 v{74+e}, {f2u(1/512)}, v{74+e}")
    for k in range(8):
        for e in range(2): P.I(f"v_sub_f32 v{56+8*e+k}, v{56+8*e+k}, v{74+e}")
    for e in range(2): P.I(f"v_mul_f32 v{72+e}, v{56+8*e}, v{56+8*e}")
    for k in range(1, 8):
        for e in range(2): P.I(f"v_fmac_f32 v{72+e}, v{56+8*e+k}, v{56+8*e+k}")
    reduce64(P, ["v72", "v73"], [t0, t1])
    P.I(f"v_mov_b32 v77, {t0}")
    P.I(f"v_mov_b32 v78, {t1}")
    P.I("v_cmp_eq_u32 vcc, 0, v1")
    P.I("v_cndmask_b32 v76, v75, v74, vcc")
    P.I("v_cndmask_b32 v77, v78, v77, vcc")
    P.I(f"v_mov_b32 v79, {f2u(1e-5)}")
    P.I(f"v_fmamk_f32 v77, v77, {f2u(1/512)}, v79")
    P.I(f"v_mov_b32 v78, {sTAG}")
    P.I(f"v_mov_b32 v79, {sTAG}")
    P.I(f"s_lshl_b32 {t0}, s2, 7")
    P.I(f"s_lshl_b32 {t1}, {sW}, 5")
    P.I(f"s_add_u32 {t0}, {t0}, {t1}")
    P.I(f"s_add_u32 {t0}, {t0}, {WS_ST}")
    P.I("s_mov_b64 exec, 3")
    P.I(f"buffer_store_dwordx4 v[76:79], v2, {SS}, {t0} offen sc1", tag="stst")
    P.I("s_mov_b64 exec, -1")

def wt_loads(rb):
    P = Prog()
    P.I(f"v_lshl_add_u32 v{rb+16}, v0, 1, 2")
    P.I(f"""s_lshr_b32 {t0}, s2, 4
s_lshl_b32 {t0}, {t0}, 7
s_and_b32 {t1}, s2, 15
s_add_u32 {t0}, {t0}, {t1}
s_mul_i32 {t0}, {t0}, 514""")
    for idx in range(8):
        mb, r = idx >> 2, idx & 3
        P.I(f"s_add_u32 {t1}, {t0}, {mb*16*514 + r*32*514}")
        P.I(f"buffer_load_ushort v{rb+idx}, v{rb+16}, {SR}, {t1} offen")
        P.I(f"buffer_load_ushort v{rb+8+idx}, v{rb+16}, {SI}, {t1} offen")
    return P
def wt_store(rb):
    P = Prog()
    for k in range(8):
        P.I(f"v_lshl_or_b32 v{rb+k}, v{rb+2*k+1}, 16, v{rb+2*k}")
    P.I(f"v_lshlrev_b32 v{rb+16}, 13, v0")
    P.I(f"s_lshl_b32 {t0}, s2, 5")
    P.I(f"s_add_u32 {t0}, {t0}, {WS_WT}")
    P.I(f"buffer_store_dwordx4 {v4(rb)}, v{rb+16}, {SS}, {t0} offen sc1", tag="wtst")
    P.I(f"buffer_store_dwordx4 {v4(rb+4)}, v{rb+16}, {SS}, {t0} offen offset:16 sc1", tag="wtst")
    return P
def wt_flag(P):
    P.wait("wtst")
    P.I(f"s_lshl_b32 {t0}, {sW}, 10")
    P.I(f"s_lshl_b32 {t1}, s2, 2")
    P.I(f"s_add_u32 {t0}, {t0}, {t1}")
    P.I(f"s_add_u32 {t0}, {t0}, {WS_FW}")
    flag_store(P, t0)

aC32, aS32, aN32, aC64, aS64, aN64, aT1C, aT1S, aT2C, aT2S = 176, 184, 192, 200, 208, 216, 224, 232, 240, 248
def fft_consts(P):
    c, g, w16 = "v56", "v57", "v58"
    P.I(f"v_and_b32 {c}, 15, v1")
    P.I(f"v_lshrrev_b32 {g}, 4, v1")
    P.I(f"v_cvt_f32_u32 {c}, {c}")
    P.I(f"v_cvt_f32_u32 {g}, {g}")
    P.I(f"s_lshl_b32 {t0}, {sW}, 4")
    P.I(f"v_cvt_f32_u32 {w16}, {t0}")
    def frag(f, base, consts, dc, ds, dn):
        for jj in range(4):
            for e in range(2):
                P.I(f"v_fmamk_f32 v{64+e}, {f}, {f2u(consts[2*jj+e])}, {base}")
            for e in range(2):
                P.I(f"v_cos_f32 v{66+e}, v{64+e}")
                P.I(f"v_sin_f32 v{68+e}, v{64+e}")
            P.I(f"v_cvt_pk_bf16_f32 v70, v66, v67")
            P.I(f"v_cvt_pk_bf16_f32 v71, v68, v69")
            P.I(f"v_accvgpr_write_b32 a{dc+jj}, v70")
            P.I(f"v_accvgpr_write_b32 a{ds+jj}, v71")
            P.I(f"v_xor_b32 v71, 0x80008000, v71")
            P.I(f"v_accvgpr_write_b32 a{dn+jj}, v71")
    for mb in range(2):
        P.I(f"v_add_f32 v60, {f2u(16.0*mb)}, {c}")
        P.I(f"v_mul_f32 v60, {f2u(1/32)}, v60")
        P.I(f"v_mul_f32 v61, 4.0, {g}")
        P.I(f"v_mul_f32 v61, v61, v60")
        frag("v60", "v61", [(j & 3) + 16 * (j >> 2) for j in range(8)], aC32 + 4*mb, aS32 + 4*mb, aN32 + 4*mb)
    P.I(f"v_add_f32 v60, {w16}, {c}")
    P.I(f"v_mul_f32 v60, {f2u(1/64)}, v60")
    P.I(f"v_mul_f32 v61, {f2u(8.0)}, {g}")
    P.I(f"v_mul_f32 v61, v61, v60")
    for ks in range(2):
        frag("v60", "v61", [32 * ks + j for j in range(8)], aC64 + 4*ks, aS64 + 4*ks, aN64 + 4*ks)
    P.I(f"v_fma_f32 v62, {g}, 4.0, {w16}")
    for mb in range(2):
        P.I(f"v_add_f32 v60, {f2u(16.0*mb)}, {c}")
        P.I(f"v_mul_f32 v60, {f2u(1/2048)}, v60")
        P.I(f"v_mul_f32 v61, v60, v62")
        for r in range(4):
            P.I(f"v_fmamk_f32 v64, v60, {f2u(float(r))}, v61")
            P.I(f"v_cos_f32 v66, v64")
            P.I(f"v_sin_f32 v68, v64")
            P.I(f"v_accvgpr_write_b32 a{aT1C+4*mb+r}, v66")
            P.I(f"v_accvgpr_write_b32 a{aT1S+4*mb+r}, v68")
    sc = 2.0 / (2048 * 512)
    P.I(f"s_cmp_eq_u32 s2, 255")
    P.I(f"s_mov_b32 {t1}, {f2u(sc)}")
    P.I(f"s_cselect_b32 {t0}, {f2u(sc/2)}, {t1}")
    P.I(f"v_add_f32 v60, {w16}, {c}")
    P.I(f"v_mul_f32 v60, {f2u(1/2048)}, v60")
    P.I(f"v_mul_f32 v61, 4.0, {g}")
    P.I(f"v_mul_f32 v61, v61, v60")
    for mb in range(2):
        for r in range(4):
            P.I(f"v_fmamk_f32 v64, v60, {f2u(float(16*mb+r))}, v61")
            P.I(f"v_cos_f32 v66, v64")
            P.I(f"v_sin_f32 v68, v64")
            P.I(f"v_mul_f32 v66, {t0}, v66")
            P.I(f"v_mul_f32 v68, {t0}, v68")
            P.I(f"v_accvgpr_write_b32 a{aT2C+4*mb+r}, v66")
            P.I(f"v_accvgpr_write_b32 a{aT2S+4*mb+r}, v68")

def prologue(P):
    P.I(f"""s_cmp_ge_u32 s2, 256
s_cbranch_scc1 L_end""")
    if cfg.stamps or cfg.dbgtime: P.I("s_memtime s[98:99]")
    if cfg.dbgtime or cfg.padto: P.I("s_memrealtime s[96:97]")
    P.I(f"""s_load_dwordx16 s[64:79], s[0:1], 0
s_load_dwordx2 s[36:37], s[0:1], 72
v_lshrrev_b32 v2, 6, v0
v_and_b32 v1, 63, v0
s_getpc_b64 s[4:5]
L_pc:
v_readfirstlane_b32 {sW}, v2
v_lshlrev_b32 v2, 4, v1
s_and_b32 {sJ}, s2, 7
s_lshr_b32 {sI}, s2, 3
s_mov_b32 {sSPIN}, 400000""")
    P.I(f"""s_and_b32 {t0}, {sI}, 7
s_lshl_b32 {t0}, {t0}, 2
s_add_u32 {t0}, {t0}, {sW}
s_lshl_b32 {t0}, {t0}, 10
v_add_u32 v12, {t0}, v2
v_min_u32 v12, L_code_end-L_pc-16, v12
global_load_dwordx4 v[44:47], v12, s[4:5]
v_add_u32 v12, 32768, v12
v_min_u32 v12, L_code_end-L_pc-16, v12
global_load_dwordx4 v[40:43], v12, s[4:5]""")
    if cfg.mapping == 0:
        P.I(f"""s_and_b32 {sBROT}, {sI}, 7
s_and_b32 {t0}, {sJ}, 3
s_lshr_b32 {t1}, {sI}, 3
s_lshl_b32 {sPROT}, {t1}, 1
s_lshr_b32 {sMG}, {sJ}, 2
s_lshl_b32 {sMG}, {sMG}, 2
s_add_u32 {sMG}, {sMG}, {t1}
s_mul_i32 {sN}, {t0}, 7
s_add_u32 {sN}, {sN}, {sBROT}
s_cmp_eq_u32 {sBROT}, 7
s_cselect_b32 {sN}, {t0}, {sN}
s_cselect_b32 {sDFT}, 1, 0
s_cselect_b32 {sPROT}, 0, {sPROT}""")
    P.I("s_waitcnt lgkmcnt(0)")
    P.I(f"s_load_dword {sTAG}, s[36:37], {WS_EPOCH}")
    for srd, src, size in ((8, 64, 2097152), (24, 66, 1052672), (28, 68, 1052672), (12, 72, 1835008), (16, 74, 1835008),
                           (20, 76, 1835008), (32, 78, 2097152)):
        P.I(f"s_mov_b32 s{srd}, s{src}\ns_mov_b32 s{srd+1}, s{src+1}\ns_mov_b32 s{srd+2}, {size}\ns_mov_b32 s{srd+3}, 0x20000")
    P.I(f"s_mov_b32 s38, {WS_SIZE}\ns_mov_b32 s39, 0x20000")
    stats_loads(P)
    P.I(f"""s_lshl_b32 {t0}, {sPROT}, 3
v_add_u32 v8, {t0}, v1
v_and_b32 v8, 63, v8
v_lshlrev_b32 v8, 4, v8
v_add_u32 v9, {65536-1040}, v8
v_add_u32 v10, {2*(65536-1040)}, v8
v_add_u32 v11, {3*(65536-1040)}, v8
s_and_b32 {t0}, {sW}, 1
s_lshl_b32 {t0}, {t0}, 20
s_lshr_b32 {t1}, {sW}, 1
s_lshl_b32 {t1}, {t1}, 18
s_or_b32 {sXW}, {t0}, {t1}
s_lshl_b32 {t0}, {sMG}, 13
s_add_u32 {sXW}, {sXW}, {t0}
s_mul_i32 {sXM}, {sW}, {8*1040}""")
    P.I(f"""v_and_b32 v3, 31, v1
v_mul_u32_u24 v3, 1040, v3
v_lshrrev_b32 v4, 5, v1
v_lshl_add_u32 v3, v4, 4, v3
v_add_u32 v4, {2*XS}, v3""")

def tag_ready(P):
    P.I("s_waitcnt lgkmcnt(0)")
    P.I(f"s_mul_i32 {sTAG}, {sTAG}, 0x9E3779B1")
    P.I(f"s_add_u32 {sTAG}, {sTAG}, 0x7F4A7C15")

def ffn_phase1(P):
    P.I(f"""v_lshrrev_b32 v12, 3, v1
v_and_b32 v13, 7, v1
v_and_b32 v14, 2, v12
v_xor_b32 v13, v13, v14
v_mul_u32_u24 v12, 3584, v12
v_lshl_add_u32 v5, v13, 4, v12
v_xor_b32 v13, 4, v13
v_lshl_add_u32 v6, v13, 4, v12
s_mul_i32 s67, {sW}, {16*3584}
s_lshl_b32 {t0}, {sN}, 7
s_add_u32 s67, s67, {t0}
s_lshl_b32 s68, {sW}, 11""")
    P.ext(w_dma(0)); P.ext(x_dma(0)); P.ext(w_dma(1))
    if cfg.dbg: stamp(P)
    tag_ready(P)
    if cfg.dbg: stamp(P)
    stats_compute(P)
    if cfg.dbg: stamp(P)
    P.ext(w_dma(2))
    P.ext(wt_loads(128))
    if cfg.dbg: stamp(P)
    P.I(f"""v_and_b32 v12, 1, v1
s_lshl_b32 {t0}, {sW}, 1
v_add_u32 v12, {t0}, v12
v_bfe_u32 v13, v1, 3, 1
v_lshlrev_b32 v13, 1, v13
v_xor_b32 v12, v12, v13
v_bfe_u32 v13, v1, 4, 1
v_lshlrev_b32 v14, 2, v13
v_xor_b32 v12, v12, v14
v_lshlrev_b32 v12, 4, v12
v_lshl_add_u32 v12, v13, 13, v12
v_bfe_u32 v13, v1, 1, 1
v_lshl_add_u32 v12, v13, 3, v12
v_bfe_u32 v13, v1, 2, 2
v_lshl_add_u32 v12, v13, 7, v12
v_lshrrev_b32 v13, 5, v1
v_lshl_add_u32 v12, v13, 10, v12
v_add_u32 v7, {WRING}, v12""")
    for k in range(4): P.I(f"v_mov_b32 v{192+k}, 0x3f803f80")
    P.I(f"""s_lshl_b32 {t0}, {sMG}, 3
s_mul_i32 {sHB}, {t0}, 112
s_lshl_b32 {t0}, {sN}, 2
s_add_u32 {sHB}, {sHB}, {t0}
s_add_u32 {sHB}, {sHB}, {sW}
s_lshl_b32 {sHB}, {sHB}, 10
s_add_u32 {sHB}, {sHB}, {WS_H}""")
    fft_consts(P)
    if cfg.dbg: stamp(P)
    P.ext(wt_store(128))
    stamp(P)
    G = cfg.G
    for p in range(8):
        P.wait(f"P{p}", *( ["X0"] if p == 0 else []))
        P.I("s_barrier")
        if p == 0: stamp(P)
        if 1 <= p <= 5: P.ext(w_dma(p + 2))
        if p == 5: P.ext(x_dma(1))
        if p == 6:
            P.ext(x_dma(2))
        for t in range(4):
            for u in range(2):
                P.I(f"ds_read_b64_tr_b16 a[{16*p+4*t+2*u}:{16*p+4*t+2*u+1}], v7 offset:{(p%3)*16384 + t*2048 + u*512}")
            tx, reg, tg = xfrag_read(0, 4 * p + t); P.I(tx, tag=tg)
        if p == 7:
            P.I(f"v_and_b32 v12, 31, v1")
            P.I(f"v_lshlrev_b32 v12, 4, v12")
            ld = []
            for b in range(8):
                block_T(P, f"s{80+b}" if not cfg.stamps else f"s{80+b}", b)
                P.I(f"s_lshl_b32 s{80+b}, s{80+b}, 9")
                P.I(f"s_add_u32 s{80+b}, s{80+b}, {WS_ST}")
                ld.append(f"buffer_load_dwordx4 {v4(ST+4*b)}, v12, {SS}, s{80+b} offen sc1")
            for l in ld: P.I(l)
            P.I("s_waitcnt lgkmcnt(0)")
            P.wait("X1")
            P.I("s_barrier")
            for q in range(2 * G):
                assert (32 + q) % (3 * G) not in [(28 + t) % (3 * G) for t in range(4)]
                tx, reg, tg = xfrag_read(1, q); P.I(tx, tag=tg)
        for t in range(4):
            q = 4 * p + t
            _, reg, _ = xfrag_read(0, q)
            P.I(f"v_mfma_f32_32x32x16_bf16 {v16(ACC[0])}, {a4(4*q)}, {v4(reg)}, {'0' if q == 0 else v16(ACC[0])}")
            P.I(f"v_mfma_f32_32x32x16_bf16 {v16(CS)}, {a4(4*q)}, v[192:195], {'0' if q == 0 else v16(CS)}")
        if p < 7: P.I("s_waitcnt lgkmcnt(0)")
    stamp(P)
    wt_flag(P)
    poll(P, ld, [f"v{ST+4*b+2}" for b in range(8)], pre_issued_tag=True)
    stamp(P)
    for b in range(1, 8):
        P.ext(gemm1_block(b, False, ffn_epilogue(b - 1)))
    P.I("s_barrier")
    stamp(P)
    P.ext(ffn_epilogue(7))
    P.wait("hst")
    P.I(f"""s_lshl_b32 {t0}, {sMG}, 7
s_lshl_b32 {t1}, {sN}, 2
s_add_u32 {t0}, {t0}, {t1}
s_add_u32 {t0}, {t0}, {sW}
s_lshl_b32 {t0}, {t0}, 2
s_add_u32 {t0}, {t0}, {WS_FH}""")
    flag_store(P, t0)
    stamp(P)

def dft_phase1(P):
    P.ext(x_dma(0))
    tag_ready(P)
    stats_compute(P)
    P.ext(x_dma(1));
    P.ext(wt_loads(96))
    P.I(f"""v_and_b32 v12, 15, v1
v_lshlrev_b32 v5, 13, v12
v_bfe_u32 v13, v1, 4, 1
v_lshl_add_u32 v5, v13, 12, v5
v_lshrrev_b32 v14, 5, v1
v_lshl_add_u32 v5, v14, 5, v5
v_lshlrev_b32 v7, 4, v14
s_lshl_b32 {t0}, {sN}, 2
s_add_u32 {t0}, {t0}, {sW}
s_lshl_b32 {t1}, {t0}, 17
s_lshl_b32 {t2}, {sMG}, 9
s_add_u32 {sHB}, {t1}, {t2}
s_add_u32 {sHB}, {sHB}, {WS_X1}
s_lshl_b32 {t0}, {t0}, 4
s_add_u32 {t0}, {t0}, 1
v_add_u32 v12, {t0}, v12
v_cvt_f32_u32 v12, v12
v_mul_f32 v12, {f2u(1/512)}, v12
v_cvt_f32_u32 v13, v13
v_mul_f32 v13, {f2u(0.25)}, v13
v_cvt_f32_u32 v14, v14
v_mul_f32 v14, {f2u(8.0)}, v14
v_fmac_f32 v13, v14, v12""")
    fft_consts(P)
    P.ext(wt_store(96))
    P.ext(x_dma(2))
    stamp(P)
    for q in range(32):
        for jj in range(4):
            for e in range(2):
                P.I(f"v_fmamk_f32 v{120+e}, v12, {f2u(float(16*q+2*jj+e))}, v13")
            for e in range(2):
                P.I(f"v_cos_f32 v{122+e}, v{120+e}")
            P.I(f"v_cvt_pk_bf16_f32 v{128+4*q+jj}, v122, v123")
    stamp(P)
    wt_flag(P)
    P.I(f"""s_lshl_b32 {t0}, {sMG}, 12
s_add_u32 s80, {t0}, {WS_ST}
v_lshlrev_b32 v12, 4, v0""")
    poll(P, [f"buffer_load_dwordx4 v[96:99], v12, {SS}, s80 offen sc1"], ["v98"])
    P.I(f"""v_rsq_f32 v97, v97
v_lshrrev_b32 v13, 5, v0
v_subrev_u32 v13, {sBROT}, v13
v_and_b32 v13, 7, v13
v_and_b32 v14, 31, v0
v_lshl_add_u32 v13, v13, 5, v14
v_lshlrev_b32 v13, 2, v13
v_add_u32 v13, {RTAB}, v13
v_add_u32 v7, {RTAB}, v7
ds_write_b32 v13, v97""")
    P.I("s_waitcnt lgkmcnt(0)")
    P.wait("X0")
    P.I("s_barrier")
    stamp(P)
    for q in range(2 * cfg.G):
        tx, reg, tg = xfrag_read(0, q); P.I(tx, tag=tg)
    stamp(P)
    for b in range(8):
        P.ext(gemm1_block(b, True, dft_epilogue(b - 1) if b else None))
    P.I("s_barrier")
    stamp(P)
    P.ext(dft_epilogue(7))
    P.wait("hst")
    P.I(f"""s_lshl_b32 {t0}, {sN}, 2
s_add_u32 {t0}, {t0}, {sW}
s_lshl_b32 {t0}, {t0}, 3
s_add_u32 {t0}, {t0}, {sMG}
s_lshl_b32 {t0}, {t0}, 2
s_add_u32 {t0}, {t0}, {WS_FX}""")
    flag_store(P, t0)
    stamp(P)

def mf16(P, d, a, b, first):
    P.I(f"v_mfma_f32_16x16x32_bf16 {v4(d)}, {a}, {b}, {'0' if first else v4(d)}")

def colfft(P):
    P.I(f"""s_lshr_b32 {t0}, s2, 4
s_lshl_b32 {t0}, {t0}, 3
s_lshl_b32 {t1}, {sW}, 1
s_add_u32 {t0}, {t0}, {t1}
s_lshl_b32 {t0}, {t0}, 2
s_add_u32 s80, {t0}, {WS_FX}
s_lshr_b32 {t0}, s2, 6
s_lshl_b32 {t0}, {t0}, 10
s_add_u32 s81, {t0}, {WS_FW}
v_and_b32 v12, 1, v1
v_lshlrev_b32 v12, 2, v12
v_lshlrev_b32 v13, 2, v0""")
    poll(P, [f"buffer_load_dword v14, v12, {SS}, s80 offen sc1", f"buffer_load_dword v15, v13, {SS}, s81 offen sc1"], ["v14", "v15"])
    stamp(P)
    P.I(f"""v_and_b32 v12, 15, v1
v_lshrrev_b32 v13, 4, v1
s_lshl_b32 {t0}, {sW}, 10
v_lshl_add_u32 v3, v12, 6, {t0}
v_lshl_add_u32 v3, v13, 4, v3
v_lshlrev_b32 v4, 5, v0
s_lshl_b32 {t0}, s2, 13
s_add_u32 {t1}, {t0}, {WS_X1}
s_add_u32 {t2}, {t0}, {WS_X1+4096}
s_add_u32 {t3}, {t0}, {WS_WT}""")
    P.I(f"buffer_load_dwordx4 v[16:19], v3, {SS}, {t1} offen sc1")
    P.I(f"buffer_load_dwordx4 v[20:23], v3, {SS}, {t2} offen sc1")
    P.I(f"buffer_load_dwordx4 v[24:27], v4, {SS}, {t3} offen sc1")
    P.I(f"buffer_load_dwordx4 v[28:31], v4, {SS}, {t3} offen offset:16 sc1")
    P.I(f"""v_mul_u32_u24 v5, {ERS}, v12
v_lshl_add_u32 v6, v13, 4, v5
v_lshl_add_u32 v5, v13, 3, v5
s_lshl_b32 {t0}, {sW}, 5
v_add_u32 v5, {t0}, v5""")
    for k in range(32): P.I(f"v_accvgpr_read_b32 v{48+k}, a{aT1C+k}")
    T1C, T1S, T2C, T2S = 48, 56, 64, 72
    D = lambda part, mb: 32 + 8 * part + 4 * mb
    Xr, Xi = v4(16), v4(20)
    for mb in range(2):
        mf16(P, D(0, mb), Xr, a4(aC32 + 4*mb), True)
        mf16(P, D(1, mb), Xi, a4(aC32 + 4*mb), True)
    for mb in range(2):
        mf16(P, D(0, mb), Xi, a4(aS32 + 4*mb), False)
        mf16(P, D(1, mb), Xr, a4(aN32 + 4*mb), False)
    def cmul(cr, ci, conj):
        for mb in range(2):
            for r in range(4):
                P.I(f"v_mul_f32 v{88+4*mb+r}, v{D(0,mb)+r}, v{cr+4*mb+r}")
                P.I(f"v_mul_f32 v{96+4*mb+r}, v{D(1,mb)+r}, v{cr+4*mb+r}")
        s1, s2 = ("", "-") if conj else ("-", "")
        for mb in range(2):
            for r in range(4):
                P.I(f"v_fma_f32 v{88+4*mb+r}, {s1}v{D(1,mb)+r}, v{ci+4*mb+r}, v{88+4*mb+r}")
                P.I(f"v_fma_f32 v{96+4*mb+r}, {s2}v{D(0,mb)+r}, v{ci+4*mb+r}, v{96+4*mb+r}")
        for k in range(8): P.I(f"v_cvt_pk_bf16_f32 v{80+k}, v{88+2*k}, v{89+2*k}")
    def exchange(E):
        for part in range(2):
            for mb in range(2):
                k = 80 + 4 * part + 2 * mb
                P.I(f"ds_write_b64 v5, v[{k}:{k+1}] offset:{E + (part*32 + 16*mb)*ERS}")
        P.I("s_waitcnt lgkmcnt(0)")
        P.I("s_barrier")
        for ks in range(2):
            for mb in range(2):
                for part in range(2):
                    P.I(f"ds_read_b128 {v4(Y(part,mb,ks))}, v6 offset:{E + (part*32 + 16*mb)*ERS + ks*64}")
    Y = lambda part, mb, ks: 88 + 16 * ks + 8 * mb + 4 * part
    cmul(T1C, T1S, True)
    exchange(E1)
    for k in range(4):
        P.I(f"v_lshlrev_b32 v{120+2*k}, 16, v{24+k}")
        P.I(f"v_and_b32 v{121+2*k}, 0xffff0000, v{24+k}")
        P.I(f"v_lshlrev_b32 v{16+2*k}, 16, v{28+k}")
        P.I(f"v_and_b32 v{17+2*k}, 0xffff0000, v{28+k}")
    for ks in range(2):
        for mb in range(2):
            mf16(P, D(0, mb), a4(aC64 + 4*ks), v4(Y(0, mb, ks)), ks == 0)
            mf16(P, D(1, mb), a4(aC64 + 4*ks), v4(Y(1, mb, ks)), ks == 0)
        for mb in range(2):
            mf16(P, D(0, mb), a4(aS64 + 4*ks), v4(Y(1, mb, ks)), False)
            mf16(P, D(1, mb), a4(aN64 + 4*ks), v4(Y(0, mb, ks)), False)
    cmul(120, 16, False)
    exchange(E2)
    for ks in range(2):
        for mb in range(2):
            mf16(P, D(0, mb), v4(Y(0, mb, ks)), a4(aC64 + 4*ks), ks == 0)
            mf16(P, D(1, mb), v4(Y(1, mb, ks)), a4(aC64 + 4*ks), ks == 0)
        for mb in range(2):
            mf16(P, D(0, mb), v4(Y(1, mb, ks)), a4(aN64 + 4*ks), False)
            mf16(P, D(1, mb), v4(Y(0, mb, ks)), a4(aS64 + 4*ks), False)
    cmul(T2C, T2S, False)
    Ur, Ui = v4(80), v4(84)
    for sb in range(2):
        mf16(P, D(0, sb), a4(aC32 + 4*sb), Ur, True)
        mf16(P, D(1, sb), a4(aC32 + 4*sb), Ui, True)
    for sb in range(2):
        mf16(P, D(0, sb), a4(aN32 + 4*sb), Ui, False)
        mf16(P, D(1, sb), a4(aS32 + 4*sb), Ur, False)
    P.I(f"""s_lshl_b32 {t0}, s2, 13
s_add_u32 {t1}, {t0}, {WS_Z}
s_add_u32 {t2}, {t0}, {WS_Z+4096}""")
    for k in range(8): P.I(f"v_cvt_pk_bf16_f32 v{88+k}, v{32+2*k}, v{33+2*k}")
    P.I(f"buffer_store_dwordx4 v[88:91], v3, {SS}, {t1} offen sc1", tag="zst")
    P.I(f"buffer_store_dwordx4 v[92:95], v3, {SS}, {t2} offen sc1", tag="zst")
    P.wait("zst")
    P.I(f"""s_lshl_b32 {t0}, {sW}, 10
s_lshl_b32 {t1}, s2, 2
s_add_u32 {t0}, {t0}, {t1}
s_add_u32 {t0}, {t0}, {WS_FZ}""")
    flag_store(P, t0)
    stamp(P)

def kp_next(P, s):
    P.I(f"s_add_u32 {s}, {s}, 1")
    P.I(f"s_cmp_eq_u32 {s}, 14")
    P.I(f"s_cselect_b32 {s}, 0, {s}")

def gemm2(P):
    P.I(f"""s_lshl_b32 {sT0}, {sJ}, 2
s_lshr_b32 {t0}, {sI}, 3
s_add_u32 {sT0}, {sT0}, {t0}
s_lshl_b32 {sT0}, {sT0}, 1
s_and_b32 {sCT}, {sI}, 7
s_mul_i32 {sKP}, {sCT}, 7
s_lshr_b32 {sKP}, {sKP}, 2
s_lshl_b32 s82, {sW}, 15
s_add_u32 s82, s82, {STG}""")
    P.I(f"""v_lshrrev_b32 v12, 3, v1
v_and_b32 v13, 7, v1
v_and_b32 v14, 2, v12
v_lshlrev_b32 v14, 1, v14
v_xor_b32 v13, v13, v14
v_lshlrev_b32 v13, 4, v13
v_lshl_add_u32 v9, v12, 12, v13
v_lshl_add_u32 v5, v12, 10, v13
s_lshl_b32 {t0}, {sCT}, 7
v_add_u32 v5, {t0}, v5
v_add_u32 v6, {8192-1024}, v5
v_add_u32 v7, {2*(8192-1024)}, v5
v_add_u32 v8, {3*(8192-1024)}, v5""")
    P.I(f"""v_and_b32 v12, 1, v1
v_lshlrev_b32 v12, 2, v12
v_bfe_u32 v13, v1, 4, 1
v_lshl_or_b32 v12, v13, 1, v12
v_bfe_u32 v13, v1, 1, 1
v_or_b32 v12, v12, v13
v_lshlrev_b32 v12, 3, v12
v_bfe_u32 v13, v1, 3, 1
v_lshl_or_b32 v12, v13, 6, v12
v_bfe_u32 v13, v1, 2, 2
v_lshl_or_b32 v12, v13, 7, v12
v_lshrrev_b32 v13, 5, v1
v_lshl_or_b32 v12, v13, 10, v12
s_and_b32 {t0}, {sW}, 1
s_lshl_b32 {t0}, {t0}, 6
v_xor_b32 v10, {t0}, v12
v_xor_b32 v11, 64, v10
v_add_u32 v10, s82, v10
v_add_u32 v11, s82, v11
s_lshr_b32 {t0}, {sW}, 1
s_lshl_b32 {t0}, {t0}, 6
v_xor_b32 v3, {t0}, v12
v_add_u32 v3, {STG}, v3
v_add_u32 v4, 65536, v3""")
    P.I(f"s_mul_i32 s83, {sW}, {448*1024}")
    def wd_dma(pairs, s_kp):
        Q = Prog()
        for n, pr in enumerate(pairs):
            Q.I(f"s_lshl_b32 s84, {s_kp}, 15")
            Q.I(f"s_add_u32 s84, s84, s83")
            Q.I(f"s_add_u32 m0, s82, {n*4096}")
            kp_next(Q, s_kp)
            for r in range(4):
                Q.I(f"buffer_load_dwordx4 v{5+r}, {SD}, s84 offen offset:{r*1024} lds", tag=f"WD{pr}")
        return Q
    def wd_read(pairs):
        Q = Prog()
        for n, pr in enumerate(pairs):
            Q.wait(f"WD{pr}")
            for e in range(2):
                q = 2 * pr + e
                for cb in range(2):
                    for u in range(2):
                        Q.I(f"ds_read_b64_tr_b16 a[{8*q+4*cb+2*u}:{8*q+4*cb+2*u+1}], v{10+cb} offset:{n*4096 + e*2048 + u*512}")
        return Q
    P.I(f"s_mov_b32 s85, {sKP}")
    P.ext(wd_dma(range(8), "s85"))
    P.ext(wd_read(range(8)))
    P.I("s_waitcnt lgkmcnt(0)")
    P.ext(wd_dma(range(8, 14), "s85"))
    P.ext(wd_read(range(8, 14)))
    stamp(P)
    P.I(f"""s_lshr_b32 {t0}, {sT0}, 3
s_lshl_b32 {t0}, {t0}, 7
s_mul_i32 {t1}, {sW}, 28
s_add_u32 {t0}, {t0}, {t1}
s_lshl_b32 {t0}, {t0}, 2
s_add_u32 s80, {t0}, {WS_FH}
v_min_u32 v12, 27, v1
v_lshlrev_b32 v12, 2, v12""")
    poll(P, [f"buffer_load_dword v14, v12, {SS}, s80 offen sc1"], ["v14"])
    stamp(P)
    P.I(f"""s_lshr_b32 {t0}, {sW}, 1
s_add_u32 {t1}, {sT0}, {t0}
s_xor_b32 {t0}, {t0}, 1
s_add_u32 {t2}, {sT0}, {t0}
s_mul_i32 {t3}, {sW}, 28
s_mul_i32 s86, {t1}, 112
s_add_u32 s86, s86, {t3}
s_lshl_b32 s86, s86, 10
s_add_u32 s86, s86, {WS_H}
s_mul_i32 s87, {t2}, 112
s_add_u32 s87, s87, {t3}
s_lshl_b32 s87, s87, 10
s_add_u32 s87, s87, {WS_H}
s_mov_b32 s85, {sKP}""")
    HR = 224
    def h_loads(pr):
        Q = Prog()
        Q.I(f"s_lshl_b32 s84, s85, 11")
        Q.I(f"s_add_u32 s88, s84, s86")
        Q.I(f"s_add_u32 s89, s84, s87")
        kp_next(Q, "s85")
        for e in range(2):
            for tb in range(2):
                Q.I(f"buffer_load_dwordx4 {a4(HR + 16*(pr&1) + 8*e + 4*tb)}, v2, {SS}, s{88+tb} offen offset:{e*1024} sc1")
        return Q
    P.I(f"""v_and_b32 v12, 3, v1
v_bfe_u32 v13, v1, 4, 1
v_lshl_or_b32 v12, v13, 2, v12
v_bfe_u32 v13, v1, 2, 2
v_lshl_or_b32 v12, v13, 3, v12
v_lshlrev_b32 v15, 16, v12
v_lshrrev_b32 v13, 5, v1
v_lshl_or_b32 v15, v13, 5, v15
s_lshl_b32 {t1}, {t1}, 10
s_lshl_b32 {t0}, {sCT}, 7
s_add_u32 {t1}, {t1}, {t0}
s_and_b32 {t0}, {sW}, 1
s_lshl_b32 {t0}, {t0}, 6
s_add_u32 s90, {t1}, {t0}""")
    P.ext(h_loads(0)); P.ext(h_loads(1))
    Gp = Prog()
    Gp.I(f"""v_and_b32 v96, 3, v1
v_bfe_u32 v97, v1, 3, 1
v_lshl_or_b32 v96, v97, 2, v96
v_bfe_u32 v97, v1, 4, 1
v_lshl_or_b32 v96, v97, 3, v96
v_bfe_u32 v97, v1, 2, 1
v_lshl_or_b32 v96, v97, 4, v96
s_lshl_b32 s91, {sCT}, 6
s_and_b32 s92, {sW}, 1
s_lshl_b32 s92, s92, 5
s_add_u32 s91, s91, s92
v_add_u32 v96, s91, v96
v_cvt_f32_u32 v96, v96
v_mul_f32 v96, {f2u(1/512)}, v96
v_lshrrev_b32 v97, 5, v1
v_lshl_or_b32 v97, v97, 2, 1
v_cvt_f32_u32 v97, v97
v_mul_f32 v97, v97, v96""")
    for q in range(32):
        for jj in range(4):
            tb = 98 + 3 * (jj & 1)
            Gp.I(f"v_fmamk_f32 v{tb}, v96, {f2u(float(8*q+jj))}, v97")
            Gp.I(f"v_cos_f32 v{tb+1}, v{tb}")
            Gp.I(f"v_sin_f32 v{tb+2}, -v{tb}")
            Gp.I(f"v_cvt_pk_bf16_f32 v{128+4*q+jj}, v{tb+1}, v{tb+2}")
    M = Prog()
    zd = Prog()
    for pr in range(14):
        for e in range(2):
            q = 2 * pr + e
            for tb in range(2):
                for cb in range(2):
                    acc = 16 + 16 * (cb + 2 * tb)
                    M.I(f"v_mfma_f32_32x32x16_bf16 {v16(acc)}, {a4(8*q+4*cb)}, {a4(HR + 16*(pr&1) + 8*e + 4*tb)}, {'0' if q == 0 else v16(acc)}")
        if pr + 2 < 14: M.ext(h_loads(pr + 2))
        if pr == 11:
            M.I(f"buffer_load_dwordx4 v[112:115], v15, {SX}, s90 offen")
            M.I(f"buffer_load_dwordx4 v[116:119], v15, {SX}, s90 offen offset:16")
            M.I(f"""s_lshr_b32 {t0}, {sT0}, 4
s_lshl_b32 {t0}, {t0}, 10
s_lshl_b32 {t1}, {sW}, 8
s_add_u32 {t0}, {t0}, {t1}
s_add_u32 s80, {t0}, {WS_FZ}
v_lshlrev_b32 v12, 2, v1""")
            poll(M, [f"buffer_load_dword v14, v12, {SS}, s80 offen sc1"], ["v14"])
            M.I(f"""s_lshl_b32 {t0}, {sW}, 19
s_lshl_b32 {t1}, {sT0}, 6
s_add_u32 {t0}, {t0}, {t1}
s_add_u32 {t0}, {t0}, {WS_Z}""")
            M.I("s_waitcnt lgkmcnt(0)")
            for n in range(16):
                M.I(f"s_add_u32 m0, s82, {n*1024}")
                M.I(f"s_add_u32 {t1}, {t0}, {n*8*4096}")
                M.I(f"buffer_load_dwordx4 v9, {SS}, {t1} offen sc1 lds", tag="ZD")
    M = spread(M, Gp, key=lambda i: i.kind == "mfma", first=0, last=96)
    P.ext(M)
    stamp(P)
    P.I(f"v_add_u32 v12, s82, v2")
    for beta in range(1, 4):
        for k in range(4):
            P.I(f"ds_write_b128 v12, {v4(16+16*beta+4*k)} offset:{16384 + (beta-1)*4096 + k*1024}")
    for beta in range(1, 4):
        P.I(f"s_xor_b32 {t0}, {sW}, {beta}")
        P.I(f"s_lshl_b32 {t0}, {t0}, 15")
        P.I(f"s_add_u32 {t0}, {t0}, {STG + 16384 + (beta-1)*4096}")
        P.I(f"v_add_u32 v{4+beta}, {t0}, v2")
    P.I("s_waitcnt lgkmcnt(0)")
    P.wait("ZD")
    P.I("s_barrier")
    P.I(f"s_or_b32 {t0}, s2, {sW}")
    P.I(f"s_cmp_lg_u32 {t0}, 0")
    P.I("s_cbranch_scc1 L_noep")
    P.I(f"s_mov_b32 {t0}, {WS_EPOCH}")
    flag_store(P, t0, "v12", "v13")
    P.I("L_noep:")
    stamp(P)
    ZR = 96
    def zread(q):
        Q = Prog()
        for u in range(2):
            r = ZR + 4 * (q & 3) + 2 * u
            Q.I(f"ds_read_b64_tr_b16 v[{r}:{r+1}], v{3 + (q >> 4)} offset:{((q >> 3) & 1)*32768 + (q & 7)*2048 + u*512}")
        return Q
    M = Prog()
    for q in range(3): M.ext(zread(q))
    for q in range(32):
        M.I(f"v_mfma_f32_32x32x16_bf16 {v16(80)}, {v4(128+4*q)}, {v4(ZR+4*(q&3))}, {'0' if q == 0 else v16(80)}")
        if q + 3 < 32: M.ext(zread(q + 3))
    X = Prog()
    for beta in range(1, 4):
        for k in range(4):
            X.I(f"ds_read_b128 {v4(16+16*beta+4*k)}, v{4+beta} offset:{k*1024}")
    for beta in range(1, 4):
        for r in range(16):
            X.I(f"v_add_f32 v{16+r}, v{16+r}, v{16+16*beta+r}")
    for r in range(16): X.I(f"v_mul_f32 v{32+r}, {f2u(-LOG2E)}, v{16+r}")
    for r in range(16): X.I(f"v_exp_f32 v{32+r}, v{32+r}")
    for r in range(16): X.I(f"v_add_f32 v{32+r}, 1.0, v{32+r}")
    for r in range(16): X.I(f"v_rcp_f32 v{32+r}, v{32+r}")
    for r in range(16): X.I(f"v_mul_f32 v{16+r}, v{16+r}, v{32+r}")
    for k in range(8):
        X.I(f"v_lshlrev_b32 v{32+2*k}, 16, v{112+k}")
        X.I(f"v_and_b32 v{33+2*k}, 0xffff0000, v{112+k}")
    M = spread(M, X, key=lambda i: i.kind == "mfma", first=0, last=32)
    P.ext(M)
    for r in range(16): P.I(f"v_fmac_f32 v{32+r}, v{16+r}, v{80+r}")
    for k in range(8): P.I(f"v_cvt_pk_bf16_f32 v{48+k}, v{32+2*k}, v{33+2*k}")
    P.I(f"buffer_store_dwordx4 v[48:51], v15, {SO}, s90 offen")
    P.I(f"buffer_store_dwordx4 v[52:55], v15, {SO}, s90 offen offset:16")
    stamp(P)

def dump_stamps(P):
    if not cfg.stamps: return
    P.I("s_waitcnt vmcnt(0) lgkmcnt(0)")
    for i in range(16):
        if i < 14:
            P.I(f"v_mov_b32 v{16+i}, {STR[i]}")
        else:
            P.I(f"v_mov_b32 v{16+i}, {sDFT}")
    P.I(f"s_lshl_b32 {t0}, s2, 8\ns_lshl_b32 {t1}, {sW}, 6\ns_add_u32 {t0}, {t0}, {t1}\ns_add_u32 {t0}, {t0}, {WS_DBG}")
    P.I("v_mov_b32 v12, 0\ns_mov_b64 exec, 1")
    for k in range(4):
        P.I(f"buffer_store_dwordx4 {v4(16+4*k)}, v12, {SS}, {t0} offen offset:{16*k}")

def dump_time(P):
    if cfg.padto:
        P.I("L_pad:")
        P.I("s_memrealtime s[94:95]")
        P.I("s_waitcnt lgkmcnt(0)")
        P.I("s_sub_u32 s94, s94, s96")
        P.I(f"s_cmp_lt_u32 s94, {cfg.padto}")
        P.I("s_cbranch_scc1 L_pad")
    if not cfg.dbgtime: return
    P.I("s_waitcnt vmcnt(0) lgkmcnt(0)")
    P.I("s_load_dwordx2 s[4:5], s[0:1], 64")
    P.I("s_memrealtime s[94:95]")
    P.I("s_memtime s[92:93]")
    P.I("s_waitcnt lgkmcnt(0)")
    P.I("s_mov_b32 s6, 256\ns_mov_b32 s7, 0x20000")
    P.I("s_sub_u32 s92, s92, s98")
    P.I("s_not_b32 s96, s96")
    P.I("v_mov_b32 v16, s94\nv_mov_b32 v17, s96\nv_mov_b32 v18, s92\nv_mov_b32 v12, 0\ns_mov_b64 exec, 1")
    P.I("buffer_atomic_umax v16, v12, s[4:7], 0 offen")
    P.I("buffer_atomic_umax v17, v12, s[4:7], 0 offen offset:4")
    P.I("buffer_atomic_umax v18, v12, s[4:7], 0 offen offset:8")

def build():
    P = Prog()
    prologue(P)
    P.I(f"s_cmp_eq_u32 {sDFT}, 1")
    P.I("s_cbranch_scc1 L_dft")
    base = nstamp[0]
    F = Prog(); ffn_phase1(F)
    F.I("s_waitcnt vmcnt(0) lgkmcnt(0)")
    D = Prog(); nstamp[0] = base
    D.I("L_dft:")
    dft_phase1(D)
    D.I("s_waitcnt vmcnt(0) lgkmcnt(0)")
    D.I("s_branch L_join")
    R = Prog()
    R.I("L_join:")
    R.assume()
    if cfg.stop_after != "p1":
        colfft(R)
        if cfg.stop_after != "fft":
            gemm2(R)
    dump_stamps(R)
    dump_time(R)
    R.I("L_end:")
    R.I("s_endpgm")
    pro = resolve_waits(P.L + F.L + R.L)
    dall = resolve_waits(P.L + D.L)
    k = next(i for i, x in enumerate(dall) if x.text == "L_dft:")
    dpart = dall[k:]
    sl = resolve_waits(slow.L)
    L = pro + [Ins("s_nop 7")] + dpart + sl
    L, nops = pad_hazards(L)
    body = render(L)
    hdr = open("cdna_kernels/" + NAME + ".s.ref").read().split("; Override launch")[0]
    s = hdr + f"""; @launch grid=(256,1,1) block=(256,1,1) lds=163840
.amdgcn_target "amdgcn-amd-amdhsa--gfx950"
.text
.globl {NAME}_kernel
.p2align 8
.type {NAME}_kernel,@function
{NAME}_kernel:
{body}    s_endpgm
L_code_end:
.section .rodata,"a"
.p2align 6
.amdhsa_kernel {NAME}_kernel
  .amdhsa_next_free_vgpr 512
  .amdhsa_next_free_sgpr 102
  .amdhsa_accum_offset 256
  .amdhsa_group_segment_fixed_size 0
  .amdhsa_kernarg_size 80
  .amdhsa_user_sgpr_count 2
  .amdhsa_user_sgpr_kernarg_segment_ptr 1
  .amdhsa_system_sgpr_workgroup_id_x 1
.end_amdhsa_kernel
"""
    return s, len(L), nops

if __name__ == "__main__":
    out = sys.argv[1]
    for a in sys.argv[2:]:
        k, v = a.split("=")
        setattr(cfg, k, eval(v))
    s, n, nops = build()
    open(out, "w").write(s)
    print("instructions", n, "nops", nops)
```
